```python
import torch

def _softmax(x, axis=-1):
    return torch.softmax(x, dim=axis)
def _gelu(x):
    return torch.nn.functional.gelu(x, approximate="tanh")
def _silu(x):
    return torch.nn.functional.silu(x)
def _sigmoid(x):
    return torch.sigmoid(x)
def _layernorm(x, axis=-1, eps=1e-5):
    m = x.mean(dim=axis, keepdim=True)
    v = x.var(dim=axis, keepdim=True, unbiased=False)
    return (x - m) / torch.sqrt(v + eps)
def _scatter_add(tgt, idx, src, axis=0):
    return tgt.clone().index_add_(axis, idx, src)
def _segment_sum(src, seg, n):
    out = torch.zeros((n,) + src.shape[1:], dtype=src.dtype)
    return out.index_add_(0, seg, src)
def _pad(x, pw):
    flat = tuple(v for pair in reversed(pw) for v in pair)
    return torch.nn.functional.pad(x, flat)

kernel_name = 'gated_mix__ssm_conv_s4d__ssm_conv_h3__prompt'

def setup_inputs():

    _w = (lambda a: (lambda t: t.to(torch.bfloat16) if t.is_floating_point() else t)(torch.as_tensor(a)))
    def _A_setup():
        Bsz, L, D, N = 1, 2048, 1024, 128
        return {
            "u": _w((lambda *s: torch.randn(*s, dtype=torch.bfloat16) * 0.05)(Bsz, L, D)),
            "log_A_real": _w((lambda *s: torch.randn(*s, dtype=torch.bfloat16) * 3.2)(D, N) * 0.5),
            "A_imag": _w((lambda *s: torch.randn(*s, dtype=torch.bfloat16) * 0.05)(D, N) * 3.14),
            "C_real": _w((lambda *s: torch.randn(*s, dtype=torch.bfloat16) * 0.1)(D, N) / N ** 0.5),
            "C_imag": _w((lambda *s: torch.randn(*s, dtype=torch.bfloat16) * 0.1)(D, N) / N ** 0.5),
            "log_dt": _w((lambda *s: torch.randn(*s, dtype=torch.bfloat16) * 0.05)(D) * 0.5 - 4.0),
            "D_skip": _w((lambda *s: torch.randn(*s, dtype=torch.bfloat16) * 0.05)(D)),
        }
    _A_in = _A_setup()

    def _B_setup():
        B, S, D = 1, 2048, 1024
        ks = 4
        return {
            "q": _w((lambda *s: torch.randn(*s, dtype=torch.bfloat16) * 0.05)(B, S, D)),
            "k": _w((lambda *s: torch.randn(*s, dtype=torch.bfloat16) * 0.4)(B, S, D)),
            "v": _w((lambda *s: torch.randn(*s, dtype=torch.bfloat16) * 0.2)(B, S, D)),
            "shift_k": _w((lambda *s: torch.randn(*s, dtype=torch.bfloat16) * 0.4)(D, ks) * 0.5),
            "ssm_k": _w((lambda *s: torch.randn(*s, dtype=torch.bfloat16) * 0.4)(D, S) * (1.0 / S ** 0.5)),
            "ssm_D": _w((lambda *s: torch.randn(*s, dtype=torch.bfloat16) * 0.4)(D)),
        }
    _B_in = _B_setup()

    return {
        "A_u": _A_in["u"],
        "A_log_A_real": _A_in["log_A_real"],
        "A_A_imag": _A_in["A_imag"],
        "A_C_real": _A_in["C_real"],
        "A_C_imag": _A_in["C_imag"],
        "A_log_dt": _A_in["log_dt"],
        "A_D_skip": _A_in["D_skip"],
        "B_q": _B_in["q"],
        "B_k": _B_in["k"],
        "B_v": _B_in["v"],
        "B_shift_k": _B_in["shift_k"],
        "B_ssm_k": _B_in["ssm_k"],
        "B_ssm_D": _B_in["ssm_D"],
        "gate_w": _w((lambda *s: torch.randn(*s, dtype=torch.bfloat16) * 0.05)(1024) * 16.0),
    }

def reference(A_u, A_log_A_real, A_A_imag, A_C_real, A_C_imag, A_log_dt, A_D_skip, B_q, B_k, B_v, B_shift_k, B_ssm_k, B_ssm_D, gate_w):
    def _A_ref(u, log_A_real, A_imag, C_real, C_imag, log_dt, D_skip):
        L = u.shape[1]
        dt = torch.exp(log_dt)
        A = -torch.exp(log_A_real) + 1j * A_imag
        C = (C_real + 1j * C_imag) * dt[:, None]
        pos = (lambda x, dt: x.to(dt))(torch.arange(L), log_dt.dtype)
        P = torch.exp((A * dt[:, None])[:, :, None] * pos[None, None, :])
        K = 2.0 * torch.einsum("dn,dnl->dl", C, P).real
        L2 = 2 * L
        u_t = (lambda x, *d: x.permute(*d))(u, 0, 2, 1)
        Kf = (lambda x, *a, **k: torch.fft.rfft(x.float(), *a, **k))(K, L2)
        Uf = (lambda x, *a, **k: torch.fft.rfft(x.float(), *a, **k))(u_t, L2)
        y = (lambda x, *a, **k: torch.fft.irfft(x, *a, **k).to(torch.bfloat16))(Uf * Kf[None, :, :], L2)[:, :, :L]
        y = (lambda x, *d: x.permute(*d))(y, 0, 2, 1)
        return y + u * D_skip[None, None, :]

    def _B_ref(q, k, v, shift_k, ssm_k, ssm_D):
        B, S, D = q.shape
        ks = shift_k.shape[-1]
        k_pad = _pad(k, ((0, 0), (ks - 1, 0), (0, 0)))
        k_shift = torch.zeros_like(k)
        for t in range(ks):
            k_shift = k_shift + k_pad[:, t:t + S, :] * shift_k[:, ks - 1 - t][None, None, :]
        kv = k_shift * v
        L = 2 * S
        kv_pad = _pad(kv, ((0, 0), (0, S), (0, 0)))
        kf_pad = _pad(ssm_k, ((0, 0), (0, S)))
        kv_f = (lambda x, axes=(-2,-1): torch.fft.rfft2(x.float(), dim=axes))(kv_pad[:, None, :, :], axes=(1, 2))
        kf_f = (lambda x, axes=(-2,-1): torch.fft.rfft2(x.float(), dim=axes))(kf_pad[:, None, :], axes=(1, 2))
        kf_f = (lambda x, *d: x.permute(*d))(kf_f, 1, 2, 0)
        y_f = kv_f * kf_f[None, :, :, :]
        y = (lambda x, s, axes=(-2,-1): torch.fft.irfft2(x, s=s, dim=axes).to(torch.bfloat16))(y_f, (1, L), axes=(1, 2))[:, 0, :S, :]
        y = y + kv * ssm_D[None, None, :]
        return q * y

    x = A_u
    g = _sigmoid((x * gate_w).sum(-1, keepdims=True))
    a = _A_ref(x, A_log_A_real, A_A_imag, A_C_real, A_C_imag, A_log_dt, A_D_skip)
    b = _B_ref(x, B_k, B_v, B_shift_k, B_ssm_k, B_ssm_D)
    return g * a + (1 - g) * b
```

```python
import re

TRANS = ('v_exp_f32','v_log_f32','v_rcp_f32','v_rsq_f32','v_sqrt_f32','v_sin_f32','v_cos_f32')

def _expand(tok):
    tok = tok.strip()
    neg = False
    m = re.fullmatch(r'-?\|?(abs\()?([vsa])(\d+)\)?\|?', tok)
    if m: return [(m.group(2), int(m.group(3)))]
    m = re.fullmatch(r'-?([vsa])\[(\d+):(\d+)\]', tok)
    if m: return [(m.group(1), i) for i in range(int(m.group(2)), int(m.group(3))+1)]
    if tok == 'vcc': return [('s','vcc')]
    if tok == 'exec': return [('s','exec')]
    if tok == 'm0': return [('s','m0')]
    return []

class Inst:
    def __init__(self, text):
        self.text = text
        t = text.split(';')[0].strip()
        parts = t.split(None, 1)
        self.op = parts[0]
        self.args = []
        if len(parts) > 1:
            self.args = [a.strip() for a in re.split(r',(?![^\[]*\])', parts[1])]
        op = self.op
        self.is_mfma = op.startswith('v_mfma')
        self.is_valu = op.startswith('v_') and not self.is_mfma
        self.is_trans = any(op.startswith(x) for x in TRANS)
        self.is_ds = op.startswith('ds_')
        self.is_vmem = op.startswith('global_') or op.startswith('buffer_') or op.startswith('flat_')
        self.is_salu = op.startswith('s_')
        self.dpp = ('row_' in t) or ('quad_perm' in t) or ('wave_' in t) or op.endswith('_dpp')
        self.wr = []; self.rd = []
        a = [x.split()[0] if x else x for x in self.args]
        if self.is_mfma:
            self.wr = _expand(a[0]); self.rdA = _expand(a[1]) + _expand(a[2]); self.rdC = _expand(a[3]); self.rd = self.rdA + self.rdC
        elif self.is_valu:
            if op.startswith('v_cmp'):
                self.wr = _expand(a[0]); self.rd = sum((_expand(x) for x in a[1:]), [])
                if op.startswith('v_cmpx'): self.wr += [('s','exec')]
            elif op.startswith('v_readlane') or op.startswith('v_readfirstlane'):
                self.wr = _expand(a[0]); self.rd = sum((_expand(x) for x in a[1:]), [])
            elif op in ('v_add_co_u32','v_sub_co_u32','v_addc_co_u32','v_subb_co_u32','v_subrev_co_u32'):
                self.wr = _expand(a[0]) + _expand(a[1]); self.rd = sum((_expand(x) for x in a[2:]), [])
            elif 'permlane' in op and 'swap' in op:
                self.wr = _expand(a[0]) + _expand(a[1]); self.rd = list(self.wr)
            else:
                self.wr = _expand(a[0]); self.rd = sum((_expand(x) for x in a[1:]), [])
                if op.startswith('v_fmac') or op.startswith('v_dot2c') or op.startswith('v_pk_fmac') or op.startswith('v_writelane') or self.dpp:
                    self.rd += self.wr
                if op.startswith('v_cndmask') and len(a) == 3: self.rd += [('s','vcc')]
        elif self.is_ds:
            if op.startswith('ds_read') or op.startswith('ds_bpermute') or op.startswith('ds_permute') or op.startswith('ds_swizzle'):
                self.wr = _expand(a[0]); self.rd = sum((_expand(x) for x in a[1:]), [])
                if 'd16' in op: self.rd += self.wr
            else:
                self.rd = sum((_expand(x) for x in a), [])
        elif self.is_vmem:
            if 'load' in op and ' lds' not in t:
                self.wr = _expand(a[0]); self.rd = sum((_expand(x) for x in a[1:]), [])
            elif 'atomic' in op and 'sc0' in t:
                self.wr = _expand(a[0]); self.rd = sum((_expand(x) for x in a[1:]), [])
            else:
                self.rd = sum((_expand(x) for x in a), [])
        elif self.is_salu:
            if op.startswith('s_cmp') or op.startswith('s_waitcnt') or op.startswith('s_cbranch') or op in ('s_branch','s_barrier','s_nop','s_endpgm','s_sleep','s_setprio'):
                self.rd = sum((_expand(x) for x in a), [])
            else:
                self.wr = _expand(a[0]) if a else []
                self.rd = sum((_expand(x) for x in a[1:]), [])
                if 'saveexec' in op: self.wr += [('s','exec')]
        self.states = 1
        if op == 's_nop': self.states = int(a[0], 0) + 1
        self.wide_store = (self.is_vmem and ('store_dwordx4' in op or 'store_dwordx3' in op))

class Asm:
    def __init__(self):
        self.lines = []
        self.hist = []
        self.nops = 0
    def raw(self, s): self.lines.append(s)
    def comment(self, s): self.lines.append('  ; ' + s)
    def label(self, name):
        self.lines.append(name + ':')
    def need(self, ins):
        req = 0
        dist = 0
        for p in reversed(self.hist):
            if dist > 20: break
            w = set(p.wr)
            r = set(ins.rd); iw = set(ins.wr)
            n = 0
            vw = {x for x in w if x[0] in ('v','a')}
            sw = {x for x in w if x[0] == 's'}
            if p.is_valu:
                if ins.is_mfma and (vw & r): n = max(n, 2)
                if p.is_trans and ins.is_valu and not ins.is_trans and (vw & (r | iw)): n = max(n, 1)
                if p.is_trans and (ins.is_trans) and (vw & r): n = max(n, 1)
                if ins.is_valu and ins.dpp and (vw & r): n = max(n, 2)
                if ins.is_valu and (ins.op.startswith('v_readlane') or ins.op.startswith('v_readfirstlane')) and (vw & r): n = max(n, 1)
                if ins.is_valu and 'permlane' in ins.op and (vw & r): n = max(n, 2)
                if sw:
                    if ins.is_valu and (sw & r): n = max(n, 2)
                    if ins.is_valu and ins.op.startswith(('v_readlane','v_writelane')) and (sw & r): n = max(n, 4)
                    if ins.is_vmem and (sw & r): n = max(n, 5)
                    if ins.is_salu and (sw & r): n = max(n, 1)
                    if ('s','exec') in sw and ins.is_mfma: n = max(n, 4)
                    if ('s','exec') in sw and ins.is_valu and ins.dpp: n = max(n, 5)
                if p.op.startswith('v_dot') and (vw & (r | iw)):
                    if not (ins.op == p.op and not (vw & set(sum((_expand(x.split()[0]) for x in ins.args[1:3]), [])))): n = max(n, 3)
            if p.is_mfma:
                d = set(p.wr)
                if ins.is_mfma:
                    if d & set(ins.rdA): n = max(n, 8)
                    c = set(ins.rdC)
                    if d & c and c != d: n = max(n, 6)
                    if d & set(ins.wr) and set(ins.wr) != d: n = max(n, 8)
                else:
                    if (ins.is_valu or ins.is_ds or ins.is_vmem) and (d & (r | iw)): n = max(n, 8)
                    if ins.is_valu and (set(p.rdC) & iw): n = max(n, 3)
            if p.wide_store and (ins.is_valu) and (set(p.rd) & iw): n = max(n, 2)
            if p.is_ds and p.op in ('ds_write_b128','ds_write_b96') and ins.is_valu and (set(p.rd) & iw): n = max(n, 2)
            if p.is_salu and ('s','m0') in w and (ins.is_vmem and ' lds' in ins.text or 'addtid' in ins.op): n = max(n, 1)
            if p.is_salu and ('s','exec') in w and ins.is_valu and ins.dpp: n = max(n, 0)
            if n > dist: req = max(req, n - dist)
            dist += p.states
        return req
    def __call__(self, text):
        ins = Inst(text)
        n = self.need(ins)
        while n > 0:
            k = min(n, 16)
            nop = Inst(f's_nop {k-1}')
            self.lines.append(f'  s_nop {k-1}')
            self.hist.append(nop); self.nops += k
            n -= k
        self.lines.append('  ' + text)
        self.hist.append(ins)
        if len(self.hist) > 64: self.hist = self.hist[-40:]
    stamps = False
    def stamp(self, i, real=False):
        if not self.stamps: return
        self('s_memrealtime s[78:79]' if real else 's_memtime s[78:79]')
        self('s_waitcnt lgkmcnt(0)')
        self(f's_mov_b32 s{80+i}, s78')
    def dump_stamps(self, base):
        if not self.stamps: return
        self('s_lshl_b32 s7, s2, 3'); self('s_add_u32 s7, s7, s6'); self('s_lshl_b32 s7, s7, 6')
        self(f's_add_u32 s7, s7, {base}')
        self('s_mov_b64 exec, 1')
        self('v_mov_b32 v20, s7')
        for i in range(16): self(f'v_mov_b32 v{i}, s{80+i}')
        for k in range(4): self(f'global_store_dwordx4 v20, v[{4*k}:{4*k+3}], s[48:49] offset:{16*k}')
    def text(self): return '\n'.join(self.lines) + '\n'
```

```python
LOG2E = '0x3fb8aa3b'
WS_G    = 0x10000
WS_U    = 0x100000
P_X, P_LOGA, P_AIM, P_CRE, P_CIM, P_LOGDT, P_DSKIP, P_Q = 16,18,20,22,24,26,28,30
P_K, P_V, P_SHK, P_SSMK, P_SSMD, P_GW, P_OUT, P_DBG, P_WS = 32,34,36,38,40,42,44,46,48
def sp(n): return f's[{n}:{n+1}]'
def vr(n,c=1): return f'v{n}' if c==1 else f'v[{n}:{n+c-1}]'
KARR=0; KPITCH=4128
KD=33024; KDP=3072
R1=45312
TAB=R1; TABW=8704; TABP=272
U=R1; UCC=4672; UPH=1168
GA=U+8*UCC
EX=GA+8192

def cmul(a, d, x, y, t):
    a(f'v_pk_mul_f32 {vr(t,2)}, {vr(x,2)}, {vr(y,2)} op_sel:[1,1] op_sel_hi:[1,0]')
    a(f'v_pk_fma_f32 {vr(d,2)}, {vr(x,2)}, {vr(y,2)}, {vr(t,2)} op_sel:[0,0,0] op_sel_hi:[0,1,1] neg_lo:[0,0,1]')

def cons_loads(a):
    a('s_lshl_b32 s60, s4, 6')
    a('s_lshl_b32 s7, s5, 2')
    a('s_add_u32 s60, s60, s7')
    a('s_lshr_b32 s61, s6, 1')
    a('s_add_u32 s61, s61, s60')
    a('s_and_b32 s62, s6, 1')
    a('s_lshl_b32 s7, s61, 8')
    a('s_lshl_b32 s8, s62, 7')
    a('s_add_u32 s7, s7, s8')
    a('v_lshlrev_b32 v3, 1, v2')
    a('v_add_u32 v3, s7, v3')
    a('s_lshl_b32 s8, s61, 1')
    a('v_mov_b32 v4, s8')
    a('s_lshl_b32 s7, s61, 12')
    a('s_lshl_b32 s8, s62, 11')
    a('s_add_u32 s7, s7, s8')
    a('v_lshlrev_b32 v5, 4, v2')
    a('v_add_u32 v5, s7, v5')
    a('s_and_b32 s63, s6, 3')
    a('s_add_u32 s7, s63, s60')
    a('s_lshl_b32 s7, s7, 1')
    a('v_mov_b32 v6, s7')
    a('s_lshr_b32 s64, s6, 2')
    a('s_cmp_eq_u32 s64, 0')
    a(f's_cselect_b32 s66, s{P_DSKIP}, s{P_SSMD}')
    a(f's_cselect_b32 s67, s{P_DSKIP+1}, s{P_SSMD+1}')

def cons_issue(a):
    a(f'global_load_ushort v100, v3, {sp(P_LOGA)}')
    a(f'global_load_ushort v101, v3, {sp(P_AIM)}')
    a(f'global_load_ushort v102, v3, {sp(P_CRE)}')
    a(f'global_load_ushort v103, v3, {sp(P_CIM)}')
    a(f'global_load_ushort v104, v4, {sp(P_LOGDT)}')
    a(f'global_load_dwordx4 v[108:111], v5, {sp(P_SSMK)} nt')
    a(f'global_load_dwordx4 v[112:115], v5, {sp(P_SSMK)} offset:1024 nt')
    a(f'global_load_ushort v105, v6, s[66:67]')

def zero_init(a):
    for i in range(4): a(f'v_mov_b32 v{8+i}, 0')
    a('v_lshlrev_b32 v7, 4, v0')
    a(f'ds_write_b128 v7, v[8:11] offset:{KD}')
    a('v_cmp_gt_u32 vcc, 256, v0')
    a('s_and_saveexec_b64 s[14:15], vcc')
    a('s_cbranch_execz L_zi1_%s' % a.tag)
    a(f'ds_write_b128 v7, v[8:11] offset:{KD+8192}')
    a.label('L_zi1_%s' % a.tag)
    a('s_mov_b64 exec, s[14:15]')
    a('v_cmp_gt_u32 vcc, 16, v0')
    a('s_and_saveexec_b64 s[14:15], vcc')
    a('s_cbranch_execz L_zi2_%s' % a.tag)
    a('v_lshrrev_b32 v7, 1, v0')
    a(f'v_mul_u32_u24 v7, {KPITCH}, v7')
    a('v_and_b32 v12, 1, v0')
    a('v_lshl_add_u32 v7, v12, 4, v7')
    a(f'ds_write_b128 v7, v[8:11] offset:{KARR}')
    a.label('L_zi2_%s' % a.tag)
    a('s_mov_b64 exec, s[14:15]')

def kgen(a):
    for r in (100,101,102,103,104): a(f'v_lshlrev_b32 v{r}, 16, v{r}')
    a(f'v_mul_f32 v104, {LOG2E}, v104'); a(f'v_mul_f32 v100, {LOG2E}, v100')
    a('v_exp_f32 v104, v104'); a('v_exp_f32 v100, v100')
    a('v_cvt_pk_bf16_f32 v106, v104, v100')
    a('v_lshlrev_b32 v104, 16, v106')
    a('v_and_b32 v100, 0xffff0000, v106')
    a('v_mul_f32 v100, v100, v104')
    a('v_mul_f32 v101, v101, v104')
    a(f'v_mul_f32 v100, 0xbfb8aa3b, v100')
    a('v_mul_f32 v101, 0.15915494, v101')
    a('v_add_f32 v104, v104, v104')
    Y=20; E1=22; E8=24; E128=26; T=28
    a(f'v_mul_f32 v{Y}, v102, v104'); a(f'v_mul_f32 v{Y+1}, v103, v104')
    for (E,p) in ((E1,1.0),(E8,8.0),(E128,128.0)):
        import struct
        lit = '0x%08x' % struct.unpack('<I', struct.pack('<f', p))[0]
        if p == 1.0:
            a(f'v_exp_f32 v30, v100'); a('v_fract_f32 v31, v101')
        else:
            a(f'v_mul_f32 v30, {lit}, v100'); a(f'v_mul_f32 v31, {lit}, v101')
            a('v_exp_f32 v30, v30'); a('v_fract_f32 v31, v31')
        a(f'v_cos_f32 v{E}, v31'); a(f'v_sin_f32 v{E+1}, v31')
        a(f'v_mul_f32 v{E}, v{E}, v30'); a(f'v_mul_f32 v{E+1}, v{E+1}, v30')
    a(f's_mul_i32 s7, s6, {TABW}')
    a(f's_add_u32 s7, s7, {TAB}')
    a('v_lshlrev_b32 v16, 2, v2')
    a('v_add_u32 v16, s7, v16')
    a('v_and_b32 v17, 15, v2')
    a(f'v_mul_u32_u24 v17, {TABP}, v17')
    a('v_lshrrev_b32 v18, 4, v2')
    a('v_lshl_add_u32 v17, v18, 4, v17')
    a('v_add_u32 v17, s7, v17')
    YB = 16*TABP
    def put(row, reg, neg=False):
        a(f'v_cvt_pk_bf16_f32 v19, v{reg}, {"-" if neg else ""}v{reg+1}')
        a(f'ds_write_b32 v16, v19 offset:{row*TABP}')
    put(16, Y, True)
    for j in range(1,16):
        cmul(a, Y, Y, E8, T)
        put(16+j, Y, True)
    R0=32
    a(f'v_mov_b32 v{R0}, 1.0'); a(f'v_mov_b32 v{R0+1}, 0')
    a(f'v_mov_b32 v{R0+2}, v{E1}'); a(f'v_mov_b32 v{R0+3}, v{E1+1}')
    for r in range(2,8): cmul(a, R0+2*r, R0+2*(r-1), E1, T)
    for r in range(8): put(r, R0+2*r)
    TT=48
    put(8, E128)
    for r in range(1,8):
        cmul(a, TT, E128, R0+2*r, T); put(8+r, TT)
    BF=52
    AF=68
    ACC=84
    for ks in range(4): a(f'ds_read_b128 {vr(BF+4*ks,4)}, v17 offset:{YB+64*ks}')
    for ks in range(4): a(f'ds_read_b128 {vr(AF+4*ks,4)}, v17 offset:{64*ks}')
    PW=50
    cmul(a, PW, E128, E128, T)
    pend = []
    def row1(a_, rr):
        pass
    a('s_waitcnt lgkmcnt(0)')
    for ks in range(4):
        a(f'v_mfma_f32_16x16x32_bf16 {vr(ACC,4)}, {vr(AF+4*ks,4)}, {vr(BF+4*ks,4)}, ' + ('0' if ks==0 else vr(ACC,4)))
    for aa in (2,3):
        base = 4*(aa-2)
        put(base, PW)
        for r in range(1,4):
            cmul(a, TT, PW, R0+4*r, T); put(base+r, TT)
        cmul(a, PW, PW, E128, T)
    for aa in (4,5,6,7):
        base = 8+2*(aa-4)
        put(base, PW)
        cmul(a, TT, PW, R0+8, T); put(base+1, TT)
        cmul(a, PW, PW, E128, T)
    for ks in range(4): a(f'ds_read_b128 {vr(AF+4*ks,4)}, v17 offset:{64*ks}')
    a('s_waitcnt lgkmcnt(0)')
    for ks in range(4):
        a(f'v_mfma_f32_16x16x32_bf16 {vr(ACC+4,4)}, {vr(AF+4*ks,4)}, {vr(BF+4*ks,4)}, ' + ('0' if ks==0 else vr(ACC+4,4)))
    for aa in range(8,17):
        put(aa-8, PW)
        if aa<16: cmul(a, PW, PW, E128, T)
    for ks in range(4): a(f'ds_read_b128 {vr(AF+4*ks,4)}, v17 offset:{64*ks}')
    a('v_and_b32 v30, 15, v2')
    a('v_lshrrev_b32 v31, 4, v2')
    a(f's_lshr_b32 s7, s6, 1')
    a(f's_mul_i32 s7, s7, {KDP}')
    a(f's_add_u32 s7, s7, {KD}')
    a('v_lshrrev_b32 v32, 1, v31'); a('v_lshlrev_b32 v32, 7, v32')
    a('v_and_b32 v33, 1, v31'); a('v_lshl_add_u32 v32, v33, 2, v32')
    a('v_lshl_add_u32 v32, v30, 3, v32')
    a('v_lshlrev_b32 v32, 2, v32'); a('v_add_u32 v32, s7, v32')
    a('v_cmp_gt_u32 vcc, 2, v31')
    a('v_lshlrev_b32 v33, 2, v30'); a('v_lshlrev_b32 v34, 1, v30')
    a('v_cndmask_b32 v33, v34, v33, vcc')
    a('v_lshl_add_u32 v33, v31, 6, v33')
    a('v_lshlrev_b32 v33, 2, v33'); a('v_add_u32 v33, s7, v33')
    a('v_mov_b32 v34, 128'); a('v_cndmask_b32 v34, v34, 8, vcc')
    a('v_add_u32 v34, v33, v34')
    a('v_lshl_add_u32 v35, v31, 6, v30')
    a('v_lshlrev_b32 v35, 2, v35'); a('v_add_u32 v35, s7, v35')
    a('s_waitcnt lgkmcnt(0)')
    for ks in range(4):
        a(f'v_mfma_f32_16x16x32_bf16 {vr(ACC+8,4)}, {vr(AF+4*ks,4)}, {vr(BF+4*ks,4)}, ' + ('0' if ks==0 else vr(ACC+8,4)))
    for r in range(4): a(f'ds_add_f32 v32, v{ACC+r} offset:{4*r}')
    a(f'ds_add_f32 v33, v{ACC+4} offset:1024'); a(f'ds_add_f32 v33, v{ACC+5} offset:1028')
    a(f'ds_add_f32 v34, v{ACC+6} offset:1024'); a(f'ds_add_f32 v34, v{ACC+7} offset:1028')
    for r in range(4): a(f'ds_add_f32 v35, v{ACC+8+r} offset:{2048+64*r}')

def ssmk_write(a):
    a('s_lshr_b32 s7, s6, 1')
    a('s_add_u32 s7, s7, 4')
    a(f's_mul_i32 s7, s7, {KPITCH}')
    a('s_lshl_b32 s8, s62, 11')
    a('s_add_u32 s7, s7, s8')
    a('v_lshlrev_b32 v7, 4, v2')
    a('v_add_u32 v7, s7, v7')
    a(f'ds_write_b128 v7, v[108:111] offset:{KARR+32}')
    a(f'ds_write_b128 v7, v[112:115] offset:{KARR+32+1024}')

def expand(a):
    a('v_lshlrev_b32 v8, 2, v0')
    for i in range(4):
        if i: a(f'v_add_u32 v{8+i}, {i}, v8')
    for i in range(4): a(f'v_cvt_f32_u32 v{12+i}, v{8+i}')
    a('v_cvt_pk_bf16_f32 v12, v12, v13'); a('v_cvt_pk_bf16_f32 v14, v14, v15')
    a('v_lshrrev_b32 v13, 16, v12'); a('v_and_b32 v12, 0xffff, v12')
    a('v_lshrrev_b32 v15, 16, v14'); a('v_and_b32 v14, 0xffff, v14')
    a('v_cmp_gt_u32 vcc, 32, v0')
    for i in range(4):
        a(f'v_subrev_u32 v{12+i}, 0x4280, v{12+i}')
    for i in range(4):
        a(f'v_cndmask_b32 v{12+i}, v{12+i}, v{8+i}, vcc')
        a(f'v_lshlrev_b32 v{12+i}, 2, v{12+i}')
    for ch in range(4):
        for i in range(4):
            a(f'ds_read_b32 v{20+4*ch+i}, v{12+i} offset:{KD+ch*KDP}')
    a('v_lshlrev_b32 v7, 3, v0')
    for ch in range(4):
        a(f's_waitcnt lgkmcnt({12-4*ch})')
        a(f'v_cvt_pk_bf16_f32 v{40+2*ch}, v{20+4*ch}, v{21+4*ch}')
        a(f'v_cvt_pk_bf16_f32 v{41+2*ch}, v{22+4*ch}, v{23+4*ch}')
    for ch in range(4):
        a(f'ds_write_b64 v7, {vr(40+2*ch,2)} offset:{KARR+ch*KPITCH+32}')

ACC=128
FR=64
GR=32
def acc(j,s): return vr(ACC+(j*4+s)*4,4)

def ufill_issue(a, dst=32, sc1=False):
    SC=' sc1' if sc1 else ''
    a('s_lshl_b32 s7, s4, 1'); a('s_add_u32 s7, s7, s64')
    a('s_lshl_b32 s7, s7, 4'); a('s_lshl_b32 s8, s63, 2'); a('s_add_u32 s7, s7, s8')
    a('s_lshl_b32 s7, s7, 14'); a('s_lshl_b32 s8, s5, 10'); a('s_add_u32 s7, s7, s8')
    a(f's_add_u32 s7, s7, {WS_U}')
    a(f's_add_u32 s68, s{P_WS}, s7'); a(f's_addc_u32 s69, s{P_WS+1}, 0')
    a('v_lshlrev_b32 v7, 4, v2')
    a('v_add_u32 v8, 0x4000, v7'); a('v_add_u32 v9, 0x8000, v7'); a('v_add_u32 v10, 0xc000, v7')
    for k,r in enumerate((7,8,9,10)):
        a(f'global_load_dwordx4 {vr(dst+4*k,4)}, v{r}, s[68:69]{SC}')
def gload_issue(a, dst=48, sc1=False):
    SC=' sc1' if sc1 else ''
    a('v_lshlrev_b32 v11, 5, v0')
    a(f'v_add_u32 v11, {WS_G}, v11')
    a(f'global_load_dwordx4 {vr(dst,4)}, v11, {sp(P_WS)}{SC}')
    a(f'global_load_dwordx4 {vr(dst+4,4)}, v11, {sp(P_WS)} offset:16{SC}')
def upad_zero(a):
    for i in range(4): a(f'v_mov_b32 v{12+i}, 0')
    a('v_cmp_gt_u32 vcc, 256, v0')
    a('s_and_saveexec_b64 s[14:15], vcc')
    a('s_cbranch_execz L_up_%s' % a.tag)
    a('v_lshrrev_b32 v16, 5, v0'); a(f'v_mul_u32_u24 v16, {UCC}, v16')
    a('v_bfe_u32 v17, v0, 3, 2'); a(f'v_mul_u32_u24 v17, {UPH}, v17')
    a('v_add_u32 v16, v16, v17'); a('v_and_b32 v17, 7, v0'); a('v_lshl_add_u32 v16, v17, 4, v16')
    a(f'ds_write_b128 v16, v[12:15] offset:{U}')
    a.label('L_up_%s' % a.tag)
    a('s_mov_b64 exec, s[14:15]')
def ufill_write(a, src=32):
    a('v_lshrrev_b32 v16, 4, v2'); a(f'v_mul_u32_u24 v16, {UPH}, v16')
    a('v_bfe_u32 v17, v2, 2, 2'); a(f'v_mul_u32_u24 v17, {UCC}, v17')
    a('v_add_u32 v16, v16, v17'); a('v_and_b32 v17, 3, v2'); a('v_lshl_add_u32 v16, v17, 4, v16')
    a(f's_mul_i32 s7, s64, {4*UCC}'); a('s_lshl_b32 s8, s63, 8'); a('s_add_u32 s7, s7, s8')
    a('v_add_u32 v16, s7, v16')
    for k in range(4):
        a(f'ds_write_b128 v16, {vr(src+4*k,4)} offset:{U+128+64*k}')
def gfill_write(a, src=48):
    a(f'v_mov_b32 v{src+1}, v{src+2}')
    a(f'v_mov_b32 v{src+2}, v{src+4}')
    a(f'v_mov_b32 v{src+3}, v{src+6}')
    a('v_lshlrev_b32 v17, 4, v0')
    a(f'v_add_u32 v17, {GA}, v17')
    a(f'ds_write_b128 v17, {vr(src,4)}')

def fload(a):
    a('v_and_b32 v16, 3, v2'); a('v_bfe_u32 v17, v2, 2, 2'); a('v_sub_u32 v16, v16, v17')
    a('v_lshlrev_b32 v16, 3, v16'); a('v_lshrrev_b32 v17, 4, v2'); a('v_lshlrev_b32 v17, 6, v17')
    a('v_sub_u32 v16, v16, v17')
    a(f's_mul_i32 s7, s6, {KPITCH}'); a(f's_add_u32 s7, s7, {KARR+224}')
    a('v_add_u32 v16, s7, v16')
    for i in range(16):
        a(f'ds_read_b64_tr_b16 {vr(FR+4*i,2)}, v16 offset:{256*i+32}')
        a(f'ds_read_b64_tr_b16 {vr(FR+4*i+2,2)}, v16 offset:{256*i}')

vG, vUX, vEW, vER, vBP, vOUT, vGA, vSK = 3,4,5,6,7,8,9,10
XR=12
KR=16
PP=20
QQ=24
CA=(27,28,29,)
CB=(30,31,11)

def conv_setup(a):
    a('v_and_b32 v20, 15, v2')
    a('v_lshrrev_b32 v21, 4, v2')
    a(f's_mul_i32 s7, s6, {UCC}'); a(f's_add_u32 s7, s7, {U+8}')
    a('v_lshlrev_b32 v3, 3, v20'); a('v_lshl_add_u32 v3, v21, 4, v3'); a('v_add_u32 v3, s7, v3')
    a(f's_mul_i32 s7, s63, {UCC}'); a(f's_add_u32 s7, s7, {U+128}')
    a('v_lshlrev_b32 v4, 3, v20'); a('v_lshl_add_u32 v4, v21, 1, v4'); a('v_add_u32 v4, s7, v4')
    a('s_mul_i32 s7, s64, 2304'); a('s_lshl_b32 s8, s63, 1'); a('s_add_u32 s7, s7, s8'); a(f's_add_u32 s7, s7, {EX}')
    a('v_mul_u32_u24 v5, 576, v21'); a('v_lshl_add_u32 v5, v20, 3, v5'); a('v_add_u32 v5, s7, v5')
    a('s_lshl_b32 s7, s63, 6'); a('v_add_u32 v22, s7, v2')
    a('v_mul_u32_u24 v6, 144, v20'); a('v_lshrrev_b32 v23, 4, v22'); a('v_lshl_add_u32 v6, v23, 3, v6')
    a(f'v_add_u32 v6, {EX}, v6')
    a('s_lshl_b32 s7, s60, 1'); a('v_lshlrev_b32 v8, 11, v22'); a('v_add_u32 v8, s7, v8')
    a('v_lshlrev_b32 v9, 2, v22'); a(f'v_add_u32 v9, {GA}, v9')
    a('v_subrev_u32 v7, 16, v2'); a('v_add_u32 v23, 47, v2')
    a('v_cmp_gt_u32 vcc, 16, v2'); a('v_cndmask_b32 v7, v7, v23, vcc')
    a('v_cmp_eq_u32 s[70:71], 0, v2'); a('v_mov_b32 v23, 63'); a('v_cndmask_b32 v7, v7, v23, s[70:71]')
    a('v_lshlrev_b32 v7, 2, v7')
    for r in list(range(XR,XR+8))+list(CA)+list(CB): a(f'v_mov_b32 v{r}, 0')

def stage1_reads(a, j, typ):
    for r in range(4): a(f'ds_read_u16_d16_hi v{XR+r}, v4 offset:{r*UPH+128*j}')
    if typ==1:
        for r in range(4): a(f'ds_read_u16_d16_hi v{KR+r}, v4 offset:{4*UCC+r*UPH+128*j}')

def stage1_sum(j):
    D=lambda s,r: f'v{ACC+(j*4+s)*4+r}'
    L=[]
    L.append(f'v_add_f32 v{QQ}, {D(1,3)}, {D(2,2)}'); L.append(f'v_add_f32 v{QQ+1}, {D(2,3)}, {D(3,2)}')
    L.append(f'v_add_f32 v{QQ}, v{QQ}, {D(3,1)}'); L.append(f'v_mov_b32 v{QQ+2}, {D(3,3)}')
    return L

def consumer(a, fused=False):
    cons_loads(a)
    a('s_waitcnt lgkmcnt(0)')
    cons_issue(a)
    ufill_issue(a, dst=116)
    gload_issue(a, dst=132)
    zero_init(a)
    a('s_waitcnt vmcnt(9)')
    a('s_waitcnt lgkmcnt(0)')
    a('s_barrier')
    a.stamp(2)
    kgen(a)
    a.stamp(3)
    a('s_waitcnt vmcnt(7)')
    ssmk_write(a)
    a('s_waitcnt lgkmcnt(0)')
    a('s_barrier')
    a.stamp(4)
    expand(a)
    a.stamp(5)
    upad_zero(a)
    a('s_waitcnt vmcnt(0)')
    ufill_write(a, src=116)
    gfill_write(a, src=132)
    a('s_waitcnt lgkmcnt(0)')
    a('s_barrier')
    a.stamp(6)
    a('v_lshlrev_b32 v10, 16, v105')
    fload(a)
    conv_setup(a)
    a.stamp(7)
    conv(a)

def conv(a):
    tag=a.tag
    def gread(q, buf):
        for s in range(4):
            a(f'ds_read_b128 {vr(GR+16*buf+4*s,4)}, v3 offset:{s*UPH+64*(q+1)}')
    def interleave(mf, fill):
        n=len(mf); k=0
        per = (len(fill)+n-1)//n if n else 0
        for i,m in enumerate(mf):
            a(m)
            for _ in range(per):
                if k<len(fill): a(fill[k]); k+=1
        while k<len(fill): a(fill[k]); k+=1
    def step_mfmas(q):
        buf=(q+1)&1
        j0=max(0,(q+1)//2)
        L=[]
        for s in range(4):
            for j in range(j0,8):
                i=2*j-q
                c = '0' if q==-1 else acc(j,s)
                L.append(f'v_mfma_f32_16x16x32_bf16 {acc(j,s)}, {vr(FR+4*i,4)}, {vr(GR+16*buf+4*s,4)}, {c}')
        return L
    def stage1(j):
        D=lambda s,r: f'v{ACC+(j*4+s)*4+r}'
        cin = CA if j%2==0 else CB
        cout= CB if j%2==0 else CA
        a(f'v_add_f32 v{QQ}, {D(1,3)}, {D(2,2)}'); a(f'v_add_f32 v{QQ+1}, {D(2,3)}, {D(3,2)}')
        a(f'v_add_f32 v{QQ}, v{QQ}, {D(3,1)}')
        a(f'ds_bpermute_b32 v{cout[0]}, v7, v{QQ}'); a(f'ds_bpermute_b32 v{cout[1]}, v7, v{QQ+1}')
        a(f'ds_bpermute_b32 v{cout[2]}, v7, {D(3,3)}')
        for r in range(4): a(f'ds_read_u16_d16_hi v{XR+r}, v4 offset:{r*UPH+128*j}')
        a('s_cmp_eq_u32 s64, 0'); a(f's_cbranch_scc1 L_s1a_{j}_{tag}')
        for r in range(4): a(f'ds_read_u16_d16_hi v{KR+r}, v4 offset:{4*UCC+r*UPH+128*j}')
        a.label(f'L_s1a_{j}_{tag}')
        a(f'v_add_f32 v{PP+1}, {D(0,1)}, {D(1,0)}')
        a(f'v_add_f32 v{PP+2}, {D(0,2)}, {D(1,1)}'); a(f'v_add_f32 v{PP+3}, {D(0,3)}, {D(1,2)}')
        a(f'v_add_f32 v{PP+2}, v{PP+2}, {D(2,0)}'); a(f'v_add_f32 v{PP+3}, v{PP+3}, {D(2,1)}')
        a(f'v_add_f32 v{PP+3}, v{PP+3}, {D(3,0)}')
        a('s_waitcnt lgkmcnt(0)')
        for r in range(3): a(f'v_cndmask_b32 v{QQ+r}, v{cout[r]}, v{cin[r]}, s[70:71]')
        a(f'v_add_f32 v{PP}, {D(0,0)}, v{QQ}'); a(f'v_add_f32 v{PP+1}, v{PP+1}, v{QQ+1}'); a(f'v_add_f32 v{PP+2}, v{PP+2}, v{QQ+2}')
        a(f'v_cvt_pk_bf16_f32 v{QQ}, v{PP}, v{PP+1}'); a(f'v_cvt_pk_bf16_f32 v{QQ+1}, v{PP+2}, v{PP+3}')
        a(f'v_lshlrev_b32 v{PP}, 16, v{QQ}'); a(f'v_and_b32 v{PP+1}, 0xffff0000, v{QQ}')
        a(f'v_lshlrev_b32 v{PP+2}, 16, v{QQ+1}'); a(f'v_and_b32 v{PP+3}, 0xffff0000, v{QQ+1}')
        a('s_cmp_eq_u32 s64, 0'); a(f's_cbranch_scc0 L_s1b_{j}_{tag}')
        for r in range(4): a(f'v_fmac_f32 v{PP+r}, v{XR+r}, v10')
        a(f's_branch L_s1c_{j}_{tag}')
        a.label(f'L_s1b_{j}_{tag}')
        for r in range(4): a(f'v_fmac_f32 v{PP+r}, v{KR+r}, v10')
        for r in range(4): a(f'v_mul_f32 v{PP+r}, v{PP+r}, v{XR+r}')
        a.label(f'L_s1c_{j}_{tag}')
        a(f'v_cvt_pk_bf16_f32 v{QQ}, v{PP}, v{PP+1}'); a(f'v_cvt_pk_bf16_f32 v{QQ+1}, v{PP+2}, v{PP+3}')
        par=j&1
        a(f'ds_write_b16 v5, v{QQ} offset:{par*4608}'); a(f'ds_write_b16_d16_hi v5, v{QQ} offset:{par*4608+144}')
        a(f'ds_write_b16 v5, v{QQ+1} offset:{par*4608+288}'); a(f'ds_write_b16_d16_hi v5, v{QQ+1} offset:{par*4608+432}')
    def stage2(j):
        par=j&1
        a(f's_cmp_eq_u32 s64, {par}'); a(f's_cbranch_scc0 L_s2_{j}_{tag}')
        a(f'ds_read_b64 {vr(PP,2)}, v6 offset:{par*4608}'); a(f'ds_read_b64 {vr(PP+2,2)}, v6 offset:{par*4608+2304}')
        a(f'ds_read_b32 v{QQ+2}, v9 offset:{1024*j}')
        a('s_waitcnt lgkmcnt(0)')
        T=[0,1,QQ,QQ+1]
        for h in range(2):
            a(f'v_lshlrev_b32 v0, 16, v{PP+h}'); a(f'v_and_b32 v1, 0xffff0000, v{PP+h}')
            a(f'v_lshlrev_b32 v{QQ}, 16, v{PP+2+h}'); a(f'v_and_b32 v{QQ+1}, 0xffff0000, v{PP+2+h}')
            a(f'v_sub_f32 v0, v0, v{QQ}'); a(f'v_sub_f32 v1, v1, v{QQ+1}')
            a(f'v_fmac_f32 v{QQ}, v0, v{QQ+2}'); a(f'v_fmac_f32 v{QQ+1}, v1, v{QQ+2}')
            a(f'v_cvt_pk_bf16_f32 v{PP+h}, v{QQ}, v{QQ+1}')
        a(f'global_store_dwordx2 v8, {vr(PP,2)}, s[72:73]')
        a.label(f'L_s2_{j}_{tag}')
        a('s_add_u32 s72, s72, 0x80000'); a('s_addc_u32 s73, s73, 0')
    a(f's_mov_b32 s72, s{P_OUT}'); a(f's_mov_b32 s73, s{P_OUT+1}')
    gread(-1,0); gread(0,1)
    a('s_waitcnt lgkmcnt(4)')
    for q in range(-1,15):
        buf=(q+1)&1
        if q>-1: a('s_waitcnt lgkmcnt(0)')
        for m in step_mfmas(q): a(m)
        if q+2<=14 and q>-1: pass
        if q+2<=14: gread(q+2,buf)
        if q>=1 and q%2==1:
            stage1((q-1)//2)
            a('s_waitcnt lgkmcnt(0)'); a('s_barrier')
        if q>=2 and q%2==0:
            stage2((q-2)//2)
        if q in (0,2,6,10,14): a.stamp({0:8,2:9,6:10,10:11,14:12}[q])
    stage1(7)
    a('s_waitcnt lgkmcnt(0)'); a('s_barrier')
    stage2(7)
```

```python
import sys
from asmlib import Asm

NAME = 'gated_mix__ssm_conv_s4d__ssm_conv_h3__prompt'
LOG2E = '0x3fb8aa3b'
WS_FLAG = 0
WS_G    = 0x10000
WS_U    = 0x100000
P_X, P_LOGA, P_AIM, P_CRE, P_CIM, P_LOGDT, P_DSKIP, P_Q = 16,18,20,22,24,26,28,30
P_K, P_V, P_SHK, P_SSMK, P_SSMD, P_GW, P_OUT, P_DBG, P_WS = 32,34,36,38,40,42,44,46,48
def sp(n): return f's[{n}:{n+1}]'
def vr(n,c=1): return f'v{n}' if c==1 else f'v[{n}:{n+c-1}]'
S_G, S_MI, S_W = 4,5,6
PITCH=144
XS=0; KS=18432; VS=37296; PROD_LDS=55728
KARR=0; KPITCH=4128
KD=33024; KDP=3072
R1=45312
TAB=R1; TABW=8704; TABP=272
U=R1; UCC=4672; UPH=1168
GA=U+8*UCC
EX=GA+8192
CONS_LDS=R1+8*TABW

def prologue(a, preload_code=None):
    a('s_cmp_ge_u32 s2, 256')
    a('s_cbranch_scc1 L_end_%s' % a.tag)
    a('s_load_dwordx16 s[16:31], s[0:1], 0')
    a('s_load_dwordx16 s[32:47], s[0:1], 64')
    a('s_load_dwordx2 s[48:49], s[0:1], 128')
    a('s_and_b32 s3, s2, 7')
    a('s_lshl_b32 s4, s3, 1')
    a('s_bfe_u32 s3, s2, 0x10003')
    a('s_or_b32 s4, s4, s3')
    a('s_lshr_b32 s5, s2, 4')
    a('v_lshrrev_b32 v1, 6, v0')
    a('v_and_b32 v2, 63, v0')
    a('v_readfirstlane_b32 s6, v1')

def producer(a, sc1=False):
    SC = ' sc1' if sc1 else ''
    vTO,vTO2,vT1,vT2,vSW,vGO,vHO = 3,4,5,6,7,8,9
    K0,K1,V0,V1,X0,X1,H = 12,16,20,24,28,32,36
    GX,GW = 40,48
    SHW = 56
    a('v_lshrrev_b32 v5, 3, v2')
    a('v_and_b32 v6, 7, v2')
    a('v_lshlrev_b32 v3, 11, v5')
    a('v_lshl_add_u32 v3, v6, 4, v3')
    a('s_lshl_b32 s7, s5, 3')
    a('s_add_u32 s7, s7, s6')
    a('s_lshl_b32 s7, s7, 15')
    a('s_lshl_b32 s8, s4, 7')
    a('s_add_u32 s7, s7, s8')
    a('v_add_u32 v3, s7, v3')
    a('v_add_u32 v4, 0x4000, v3')
    a('s_lshl_b32 s9, s2, 3')
    a('s_add_u32 s9, s9, s6')
    a('s_lshl_b32 s10, s9, 11')
    a('v_lshlrev_b32 v10, 4, v2')
    a('v_add_u32 v8, s10, v10')
    a('s_and_b32 s11, s6, 3')
    a('s_lshl_b32 s12, s4, 2')
    a('s_add_u32 s12, s12, s11')
    a('s_lshl_b32 s12, s12, 7')
    a('v_and_b32 v11, 15, v2')
    a('v_lshlrev_b32 v9, 3, v11')
    a('v_add_u32 v9, s12, v9')
    a('s_waitcnt lgkmcnt(0)')
    a(f'global_load_dwordx4 {vr(K0,4)}, v3, {sp(P_K)} nt')
    a(f'global_load_dwordx4 {vr(K1,4)}, v4, {sp(P_K)} nt')
    a(f'global_load_dwordx4 {vr(V0,4)}, v3, {sp(P_V)} nt')
    a(f'global_load_dwordx4 {vr(V1,4)}, v4, {sp(P_V)} nt')
    a(f'global_load_dwordx4 {vr(X0,4)}, v3, {sp(P_X)} nt')
    a(f'global_load_dwordx4 {vr(X1,4)}, v4, {sp(P_X)} nt')
    for i in range(4): a(f'v_mov_b32 v{H+i}, 0')
    a('s_cmp_eq_u32 s6, 0')
    a(f's_cbranch_scc0 L_nohalo_{a.tag}')
    a('s_cmp_eq_u32 s5, 0')
    a(f's_cbranch_scc1 L_nohalo_{a.tag}')
    a('v_cmp_gt_u32 vcc, 24, v2')
    a('s_and_saveexec_b64 s[14:15], vcc')
    a('v_add_u32 v1, 0xffffe800, v3')
    a(f'global_load_dwordx4 {vr(H,4)}, v1, {sp(P_K)} nt')
    a('s_mov_b64 exec, s[14:15]')
    a.label(f'L_nohalo_{a.tag}')
    a(f'global_load_dwordx2 {vr(SHW,2)}, v9, {sp(P_SHK)}')
    a(f'global_load_dwordx4 {vr(GX,4)}, v8, {sp(P_X)}')
    a(f'global_load_dwordx4 {vr(GX+4,4)}, v8, {sp(P_X)} offset:1024')
    a(f'global_load_dwordx4 {vr(GW,4)}, v10, {sp(P_GW)}')
    a(f'global_load_dwordx4 {vr(GW+4,4)}, v10, {sp(P_GW)} offset:1024')
    a('s_mul_i32 s13, s6, 2304')
    a('v_mul_u32_u24 v7, 144, v5')
    a('v_lshl_add_u32 v7, v6, 4, v7')
    a('v_add_u32 v1, s13, v7')
    a('v_and_b32 v5, 3, v2')
    a('v_bfe_u32 v6, v2, 2, 2')
    a('v_lshrrev_b32 v60, 4, v2')
    a('s_lshr_b32 s14, s6, 2')
    a('s_lshl_b32 s14, s14, 1')
    a('s_mul_i32 s15, s14, 144')
    a('s_lshl_b32 s50, s11, 5')
    a('s_add_u32 s15, s15, s50')
    a('v_lshlrev_b32 v61, 5, v60')
    a('v_lshl_add_u32 v62, v6, 2, v61')
    a('v_mul_u32_u24 v62, 144, v62')
    a('v_lshl_add_u32 v62, v5, 3, v62')
    a('v_add_u32 v62, s15, v62')
    a('v_add_u32 v63, v61, v6')
    a('v_mul_u32_u24 v63, 144, v63')
    a('v_lshl_add_u32 v63, v5, 3, v63')
    a('v_add_u32 v63, s15, v63')
    a('v_bfe_u32 v64, v2, 2, 2')
    a('v_lshlrev_b32 v64, 10, v64')
    a('v_and_b32 v65, 3, v2')
    a('v_lshl_add_u32 v64, v65, 6, v64')
    a('v_lshl_add_u32 v64, v60, 4, v64')
    a('s_lshl_b32 s50, s11, 12')
    a('s_lshl_b32 s51, s14, 8')
    a('s_add_u32 s50, s50, s51')
    a('v_add_u32 v64, s50, v64')
    a('s_lshl_b32 s50, s4, 19')
    a('s_lshl_b32 s51, s5, 14')
    a('s_add_u32 s50, s50, s51')
    a(f's_add_u32 s50, s50, {WS_U}')
    a(f's_add_u32 s52, s{P_WS}, s50')
    a(f's_addc_u32 s53, s{P_WS+1}, 0')
    a('s_add_u32 s54, s52, 0x40000')
    a('s_addc_u32 s55, s53, 0')
    a('s_waitcnt vmcnt(5)')
    a(f'ds_write_b128 v1, {vr(K0,4)} offset:{KS+432}')
    a(f'ds_write_b128 v1, {vr(K1,4)} offset:{KS+432+1152}')
    a(f'ds_write_b128 v1, {vr(V0,4)} offset:{VS}')
    a(f'ds_write_b128 v1, {vr(V1,4)} offset:{VS+1152}')
    a(f'ds_write_b128 v1, {vr(X0,4)} offset:{XS}')
    a(f'ds_write_b128 v1, {vr(X1,4)} offset:{XS+1152}')
    a('s_cmp_eq_u32 s6, 0')
    a(f's_cbranch_scc0 L_nohalo2_{a.tag}')
    a('v_cmp_gt_u32 vcc, 24, v2')
    a('s_and_saveexec_b64 s[56:57], vcc')
    a(f'ds_write_b128 v7, {vr(H,4)} offset:{KS}')
    a('s_mov_b64 exec, s[56:57]')
    a.label(f'L_nohalo2_{a.tag}')
    a('s_waitcnt lgkmcnt(0)')
    a('s_barrier')
    XO=12
    for ts in range(2):
        for h in range(2):
            a(f'ds_read_b64_tr_b16 {vr(XO+4*ts+2*h,2)}, v62 offset:{XS+2304*h+144*ts}')
    VO=20
    for ts in range(2):
        for h in range(2):
            a(f'ds_read_b64_tr_b16 {vr(VO+4*ts+2*h,2)}, v62 offset:{VS+2304*h+144*ts}')
    KO=68
    for ts in range(2):
        for e in range(8):
            a(f'ds_read_b64_tr_b16 {vr(KO+16*ts+2*e,2)}, v63 offset:{KS+(4*e+ts)*144}')
    a('s_waitcnt vmcnt(4)')
    a(f'v_alignbit_b32 v58, v{SHW}, v{SHW}, 16')
    a(f'v_alignbit_b32 v59, v{SHW+1}, v{SHW+1}, 16')
    a('s_waitcnt lgkmcnt(15)')
    for ts in range(2):
        a(f'global_store_dwordx4 v64, {vr(XO+4*ts,4)}, s[52:53] offset:{256*ts}{SC}')
    a('s_waitcnt lgkmcnt(0)')
    KVO=100
    for ts in range(2):
        for e in range(8):
            d=KO+16*ts+2*e
            a(f'v_dot2_f32_bf16 v{d}, v{d}, v59, 0')
        for e in range(8):
            d=KO+16*ts+2*e
            a(f'v_dot2c_f32_bf16 v{d}, v{d+1}, v58')
        for e2 in range(4):
            d=KO+16*ts+4*e2
            vv=VO+4*ts+e2
            a(f'v_lshlrev_b32 v{d+1}, 16, v{vv}')
            a(f'v_and_b32 v{d+3}, 0xffff0000, v{vv}')
            a(f'v_mul_f32 v{d}, v{d}, v{d+1}')
            a(f'v_mul_f32 v{d+2}, v{d+2}, v{d+3}')
            a(f'v_cvt_pk_bf16_f32 v{KVO+4*ts+e2}, v{d}, v{d+2}')
        a(f'global_store_dwordx4 v64, {vr(KVO+4*ts,4)}, s[54:55] offset:{256*ts}{SC}')
    a('s_waitcnt vmcnt(4)')
    ACC=110
    a(f'v_mov_b32 v{ACC}, 0')
    a('v_mov_b32 v111, 0x3f803f80')
    for i in range(8):
        a(f'v_lshlrev_b32 v112, 16, v{GX+i}')
        a(f'v_and_b32 v113, 0xffff0000, v{GX+i}')
        a(f'v_lshlrev_b32 v114, 16, v{GW+i}')
        a(f'v_and_b32 v115, 0xffff0000, v{GW+i}')
        a('v_mul_f32 v112, v112, v114')
        a('v_mul_f32 v113, v113, v115')
        a('v_cvt_pk_bf16_f32 v112, v112, v113')
        a(f'v_dot2c_f32_bf16 v{ACC}, v112, v111')
    for m in ('quad_perm:[1,0,3,2]','quad_perm:[2,3,0,1]','row_half_mirror','row_mirror'):
        a(f'v_add_f32_dpp v{ACC}, v{ACC}, v{ACC} {m} row_mask:0xf bank_mask:0xf')
    a(f'v_readlane_b32 s56, v{ACC}, 0')
    a(f'v_readlane_b32 s57, v{ACC}, 16')
    a(f'v_readlane_b32 s58, v{ACC}, 32')
    a(f'v_readlane_b32 s59, v{ACC}, 48')
    a('v_mov_b32 v112, s56')
    a('v_add_f32 v112, s57, v112')
    a('v_add_f32 v112, s58, v112')
    a('v_add_f32 v112, s59, v112')
    a('v_cvt_pk_bf16_f32 v112, v112, v112')
    a('v_and_b32 v112, 0xffff0000, v112')
    a(f'v_mul_f32 v112, 0xbfb8aa3b, v112')
    a('v_exp_f32 v112, v112')
    a('v_add_f32 v112, 1.0, v112')
    a('v_rcp_f32 v112, v112')
    a('v_cvt_pk_bf16_f32 v112, v112, v112')
    a('v_and_b32 v112, 0xffff0000, v112')
    a('v_mov_b32 v113, 0')
    a('s_lshl_b32 s56, s9, 3')
    a(f's_add_u32 s56, s56, {WS_G}')
    a('v_mov_b32 v114, s56')
    a('v_cmp_eq_u32 vcc, 0, v2')
    a('s_and_saveexec_b64 s[56:57], vcc')
    a(f'global_store_dwordx2 v114, v[112:113], {sp(P_WS)}{SC}')
    a('s_mov_b64 exec, s[56:57]')

from gen_conv import consumer

def kernel_header(label):
    return f'.globl {label}\n.p2align 8\n.type {label},@function\n{label}:\n'
def kernel_desc(label, vgpr, sgpr=100):
    return (f'.amdhsa_kernel {label}\n  .amdhsa_next_free_vgpr {vgpr}\n  .amdhsa_next_free_sgpr {sgpr}\n  .amdhsa_accum_offset {(vgpr+3)//4*4}\n'
            '  .amdhsa_group_segment_fixed_size 0\n  .amdhsa_kernarg_size 136\n  .amdhsa_user_sgpr_count 2\n'
            '  .amdhsa_user_sgpr_kernarg_segment_ptr 1\n  .amdhsa_system_sgpr_workgroup_id_x 1\n  .amdhsa_float_denorm_mode_32 3\n.end_amdhsa_kernel\n')

HEAD = open('cdna_kernels/%s.s.ref' % NAME).read().split('; Override launch')[0]

def gen_2k():
    out = HEAD
    out += f'; @launch kernel=prep_kernel grid=(256,1,1) block=(512,1,1) lds={PROD_LDS}\n'
    out += f'; @launch kernel=conv_kernel grid=(256,1,1) block=(512,1,1) lds={CONS_LDS}\n'
    out += '.amdgcn_target "amdgcn-amd-amdhsa--gfx950"\n.text\n'
    a = Asm(); a.tag='p'; a.stamps=STAMPS
    prologue(a); a.stamp(0,True); a.stamp(1); producer(a); a.stamp(14); a.stamp(15,True); a.dump_stamps(0x40000)
    a.label('L_end_p'); a('s_endpgm')
    out += kernel_header('prep_kernel') + a.text()
    b = Asm(); b.tag='c'; b.stamps=STAMPS
    prologue(b); b.stamp(0,True); b.stamp(1); consumer(b); b.stamp(14); b.stamp(15,True); b.dump_stamps(0x60000)
    b.label('L_end_c'); b('s_endpgm')
    out += kernel_header('conv_kernel') + b.text()
    out += '.section .rodata,"a"\n.p2align 6\n' + kernel_desc('prep_kernel',128) + '.p2align 6\n' + kernel_desc('conv_kernel',256)
    return out

STAMPS=False
if __name__ == '__main__':
    STAMPS = 'stamps' in sys.argv
    open(sys.argv[1],'w').write(gen_2k())
```

```python
import re

TRANS = ('v_exp_f32','v_log_f32','v_rcp_f32','v_rsq_f32','v_sqrt_f32','v_sin_f32','v_cos_f32')

def _expand(tok):
    tok = tok.strip()
    neg = False
    m = re.fullmatch(r'-?\|?(abs\()?([vsa])(\d+)\)?\|?', tok)
    if m: return [(m.group(2), int(m.group(3)))]
    m = re.fullmatch(r'-?([vsa])\[(\d+):(\d+)\]', tok)
    if m: return [(m.group(1), i) for i in range(int(m.group(2)), int(m.group(3))+1)]
    if tok == 'vcc': return [('s','vcc')]
    if tok == 'exec': return [('s','exec')]
    if tok == 'm0': return [('s','m0')]
    return []

class Inst:
    def __init__(self, text):
        self.text = text
        t = text.split(';')[0].strip()
        parts = t.split(None, 1)
        self.op = parts[0]
        self.args = []
        if len(parts) > 1:
            self.args = [a.strip() for a in re.split(r',(?![^\[]*\])', parts[1])]
        op = self.op
        self.is_mfma = op.startswith('v_mfma')
        self.is_valu = op.startswith('v_') and not self.is_mfma
        self.is_trans = any(op.startswith(x) for x in TRANS)
        self.is_ds = op.startswith('ds_')
        self.is_vmem = op.startswith('global_') or op.startswith('buffer_') or op.startswith('flat_')
        self.is_salu = op.startswith('s_')
        self.dpp = ('row_' in t) or ('quad_perm' in t) or ('wave_' in t) or op.endswith('_dpp')
        self.wr = []; self.rd = []
        a = [x.split()[0] if x else x for x in self.args]
        if self.is_mfma:
            self.wr = _expand(a[0]); self.rdA = _expand(a[1]) + _expand(a[2]); self.rdC = _expand(a[3]); self.rd = self.rdA + self.rdC
        elif self.is_valu:
            if op.startswith('v_cmp'):
                self.wr = _expand(a[0]); self.rd = sum((_expand(x) for x in a[1:]), [])
                if op.startswith('v_cmpx'): self.wr += [('s','exec')]
            elif op.startswith('v_readlane') or op.startswith('v_readfirstlane'):
                self.wr = _expand(a[0]); self.rd = sum((_expand(x) for x in a[1:]), [])
            elif op in ('v_add_co_u32','v_sub_co_u32','v_addc_co_u32','v_subb_co_u32','v_subrev_co_u32'):
                self.wr = _expand(a[0]) + _expand(a[1]); self.rd = sum((_expand(x) for x in a[2:]), [])
            elif 'permlane' in op and 'swap' in op:
                self.wr = _expand(a[0]) + _expand(a[1]); self.rd = list(self.wr)
            else:
                self.wr = _expand(a[0]); self.rd = sum((_expand(x) for x in a[1:]), [])
                if op.startswith('v_fmac') or op.startswith('v_dot2c') or op.startswith('v_pk_fmac') or op.startswith('v_writelane') or self.dpp:
                    self.rd += self.wr
                if op.startswith('v_cndmask') and len(a) == 3: self.rd += [('s','vcc')]
        elif self.is_ds:
            if op.startswith('ds_read') or op.startswith('ds_bpermute') or op.startswith('ds_permute') or op.startswith('ds_swizzle'):
                self.wr = _expand(a[0]); self.rd = sum((_expand(x) for x in a[1:]), [])
                if 'd16' in op: self.rd += self.wr
            else:
                self.rd = sum((_expand(x) for x in a), [])
        elif self.is_vmem:
            if 'load' in op and ' lds' not in t:
                self.wr = _expand(a[0]); self.rd = sum((_expand(x) for x in a[1:]), [])
            elif 'atomic' in op and 'sc0' in t:
                self.wr = _expand(a[0]); self.rd = sum((_expand(x) for x in a[1:]), [])
            else:
                self.rd = sum((_expand(x) for x in a), [])
        elif self.is_salu:
            if op.startswith('s_cmp') or op.startswith('s_waitcnt') or op.startswith('s_cbranch') or op in ('s_branch','s_barrier','s_nop','s_endpgm','s_sleep','s_setprio'):
                self.rd = sum((_expand(x) for x in a), [])
            else:
                self.wr = _expand(a[0]) if a else []
                self.rd = sum((_expand(x) for x in a[1:]), [])
                if 'saveexec' in op: self.wr += [('s','exec')]
        self.states = 1
        if op == 's_nop': self.states = int(a[0], 0) + 1
        self.wide_store = (self.is_vmem and ('store_dwordx4' in op or 'store_dwordx3' in op))

class Asm:
    def __init__(self):
        self.lines = []
        self.hist = []
        self.nops = 0
        self.auto_lgkm = False
        self.dsq = []
    def raw(self, s): self.lines.append(s)
    def comment(self, s): self.lines.append('  ; ' + s)
    def label(self, name):
        self.lines.append(name + ':')
    def need(self, ins):
        req = 0
        dist = 0
        for p in reversed(self.hist):
            if dist > 20: break
            w = set(p.wr)
            r = set(ins.rd); iw = set(ins.wr)
            n = 0
            vw = {x for x in w if x[0] in ('v','a')}
            sw = {x for x in w if x[0] == 's'}
            if p.is_valu:
                if ins.is_mfma and (vw & r): n = max(n, 2)
                if p.is_trans and ins.is_valu and not ins.is_trans and (vw & (r | iw)): n = max(n, 1)
                if p.is_trans and (ins.is_trans) and (vw & r): n = max(n, 1)
                if ins.is_valu and ins.dpp and (vw & r): n = max(n, 2)
                if ins.is_valu and (ins.op.startswith('v_readlane') or ins.op.startswith('v_readfirstlane')) and (vw & r): n = max(n, 1)
                if ins.is_valu and 'permlane' in ins.op and (vw & r): n = max(n, 2)
                if sw:
                    if ins.is_valu and (sw & r): n = max(n, 2)
                    if ins.is_valu and ins.op.startswith(('v_readlane','v_writelane')) and (sw & r): n = max(n, 4)
                    if ins.is_vmem and (sw & r): n = max(n, 5)
                    if ins.is_salu and (sw & r): n = max(n, 1)
                    if ('s','exec') in sw and ins.is_mfma: n = max(n, 4)
                    if ('s','exec') in sw and ins.is_valu and ins.dpp: n = max(n, 5)
                if p.op.startswith('v_dot') and (vw & (r | iw)):
                    if not (ins.op == p.op and not (vw & set(sum((_expand(x.split()[0]) for x in ins.args[1:3]), [])))): n = max(n, 3)
            if p.is_mfma:
                d = set(p.wr)
                if ins.is_mfma:
                    if d & set(ins.rdA): n = max(n, 8)
                    c = set(ins.rdC)
                    if d & c and c != d: n = max(n, 6)
                    if d & set(ins.wr) and set(ins.wr) != d: n = max(n, 8)
                else:
                    if (ins.is_valu or ins.is_ds or ins.is_vmem) and (d & (r | iw)): n = max(n, 8)
                    if ins.is_valu and (set(p.rdC) & iw): n = max(n, 3)
            if p.wide_store and (ins.is_valu) and (set(p.rd) & iw): n = max(n, 2)
            if p.is_ds and p.op in ('ds_write_b128','ds_write_b96') and ins.is_valu and (set(p.rd) & iw): n = max(n, 2)
            if p.is_salu and ('s','m0') in w and (ins.is_vmem and ' lds' in ins.text or 'addtid' in ins.op): n = max(n, 1)
            if p.is_salu and ('s','exec') in w and ins.is_valu and ins.dpp: n = max(n, 0)
            if n > dist: req = max(req, n - dist)
            dist += p.states
        return req
    def lgkm_sync(self):
        self.dsq = []
    def __call__(self, text):
        ins = Inst(text)
        if self.auto_lgkm:
            if ins.op == 's_waitcnt' and 'lgkmcnt' in text:
                m = re.search(r'lgkmcnt\((\d+)\)', text); k = int(m.group(1))
                self.dsq = self.dsq[len(self.dsq)-k:] if k > 0 else []
                if k > 0 and len(self.dsq) > k: self.dsq = self.dsq[-k:]
            else:
                touched = set(ins.rd) | set(ins.wr)
                last = -1
                for i, d in enumerate(self.dsq):
                    if d & touched: last = i
                if last >= 0:
                    k = len(self.dsq) - 1 - last
                    k = min(k, 15)
                    w = Inst(f's_waitcnt lgkmcnt({k})')
                    self.lines.append(f'  s_waitcnt lgkmcnt({k})')
                    self.hist.append(w)
                    self.dsq = self.dsq[len(self.dsq)-k:] if k > 0 else []
                if ins.is_ds:
                    self.dsq.append(set(ins.wr))
        n = self.need(ins)
        while n > 0:
            k = min(n, 16)
            nop = Inst(f's_nop {k-1}')
            self.lines.append(f'  s_nop {k-1}')
            self.hist.append(nop); self.nops += k
            n -= k
        self.lines.append('  ' + text)
        self.hist.append(ins)
        if len(self.hist) > 64: self.hist = self.hist[-40:]
    stamps = False
    stamp_names = None
    stamp_sel = None
    def stamp(self, name, real=False):
        if not self.stamps: return
        if self.stamp_names is None: self.stamp_names = {}
        fixed = {'rt0':0,'t0':1,'rt1':15}
        if name == 'rt0':
            for k in range(80,96): self(f's_mov_b32 s{k}, 0')
        if name in fixed: i = fixed[name]
        else:
            if self.stamp_sel is not None and name not in self.stamp_sel: return
            if name in self.stamp_names: i = self.stamp_names[name]
            else:
                i = 2 + len(self.stamp_names)
                if i > 14: return
                self.stamp_names[name] = i
        self('s_memrealtime s[78:79]' if real else 's_memtime s[78:79]')
        self('s_waitcnt lgkmcnt(0)')
        self(f's_mov_b32 s{80+i}, s78')
    def dump_stamps(self, base):
        if not self.stamps: return
        self('s_lshl_b32 s7, s2, 3'); self('s_add_u32 s7, s7, s6'); self('s_lshl_b32 s7, s7, 6')
        self(f's_add_u32 s7, s7, {base}')
        self('s_mov_b64 exec, 1')
        self('v_mov_b32 v20, s7')
        for i in range(16): self(f'v_mov_b32 v{i}, s{80+i}')
        for k in range(4): self(f'global_store_dwordx4 v20, v[{4*k}:{4*k+3}], s[48:49] offset:{16*k}')
    def text(self): return '\n'.join(self.lines) + '\n'
```

```python
import sys, struct
from asmlib import Asm
NAME = 'gated_mix__ssm_conv_s4d__ssm_conv_h3__prompt'
LOG2E = '0x3fb8aa3b'
WS_EPOCH= 0x8000
WS_FLAG = 0
WS_G    = 0x10000
WS_TS   = 0x40000
WS_U    = 0x100000
P_X, P_LOGA, P_AIM, P_CRE, P_CIM, P_LOGDT, P_DSKIP, P_Q = 16,18,20,22,24,26,28,30
P_K, P_V, P_SHK, P_SSMK, P_SSMD, P_GW, P_OUT, P_DBG, P_WS = 32,34,36,38,40,42,44,46,48
def sp(n): return f's[{n}:{n+1}]'
def vr(n,c=1): return f'v{n}' if c==1 else f'v[{n}:{n+c-1}]'
def flit(x): return '0x%08x' % struct.unpack('<I', struct.pack('<f', x))[0]
KARR=0; KPITCH=4128
KD=33024; KDP=3072; KDH=12288
TAB=57600; TABP=272; TABW=16*TABP
STG=TAB+8*TABW
PITCH=144
XS=0; KS=18432; VS=37296
U=STG; UCC=4672; UPH=1168
GA=U+8*UCC
EX=GA+8192
LDS_TOTAL=STG+55728
S_TAG=74

OPT = {}

def prologue(a):
    a('s_cmp_ge_u32 s2, 256')
    a('s_cbranch_scc1 L_end')
    a('s_load_dwordx16 s[16:31], s[0:1], 0')
    a('s_load_dwordx16 s[32:47], s[0:1], 64')
    a('s_load_dwordx2 s[48:49], s[0:1], 128')
    a('s_getpc_b64 s[76:77]')
    a.label('L_pc')
    a('s_and_b32 s3, s2, 7')
    a('s_lshl_b32 s4, s3, 1')
    a('s_bfe_u32 s3, s2, 0x10003')
    a('s_or_b32 s4, s4, s3')
    a('s_lshr_b32 s5, s2, 4')
    a('v_lshrrev_b32 v1, 6, v0')
    a('v_and_b32 v2, 63, v0')
    a('v_readfirstlane_b32 s6, v1')

K0,K1,V0,V1,X0,X1,H = 128,132,136,140,144,148,152
GX,GW,SHW = 156,164,172
XO,VO,KO,KVO,W10,W32,vTR,vTRK,vST = 176,184,192,224,232,233,234,235,236

def issue_loads(a):
    a('v_lshrrev_b32 v5, 3, v2')
    a('v_and_b32 v6, 7, v2')
    a('v_lshlrev_b32 v3, 11, v5')
    a('v_lshl_add_u32 v3, v6, 4, v3')
    a('s_lshl_b32 s7, s5, 3'); a('s_add_u32 s7, s7, s6'); a('s_lshl_b32 s7, s7, 15')
    a('s_lshl_b32 s8, s4, 7'); a('s_add_u32 s7, s7, s8')
    a('v_add_u32 v3, s7, v3')
    a('v_add_u32 v4, 0x4000, v3')
    a('s_lshl_b32 s9, s2, 3'); a('s_add_u32 s9, s9, s6')
    a('s_lshl_b32 s10, s9, 11')
    a('v_lshlrev_b32 v10, 4, v2')
    a('v_add_u32 v8, s10, v10')
    a('s_and_b32 s11, s6, 3')
    a('s_lshl_b32 s12, s4, 2'); a('s_add_u32 s12, s12, s11'); a('s_lshl_b32 s12, s12, 7')
    a('v_and_b32 v11, 15, v2'); a('v_lshlrev_b32 v9, 3, v11'); a('v_add_u32 v9, s12, v9')
    a('s_lshl_b32 s60, s4, 6'); a('s_lshl_b32 s7, s5, 2'); a('s_add_u32 s60, s60, s7')
    a('s_lshr_b32 s61, s6, 1'); a('s_add_u32 s61, s61, s60')
    a('s_and_b32 s62, s6, 1')
    a('s_lshl_b32 s7, s61, 8'); a('s_lshl_b32 s8, s62, 7'); a('s_add_u32 s7, s7, s8')
    a('v_lshlrev_b32 v12, 1, v2'); a('v_add_u32 v12, s7, v12')
    a('s_lshl_b32 s8, s61, 1'); a('v_mov_b32 v13, s8')
    a('s_lshl_b32 s7, s61, 12'); a('s_lshl_b32 s8, s62, 11'); a('s_add_u32 s7, s7, s8')
    a('v_add_u32 v14, s7, v10')
    a('s_and_b32 s63, s6, 3'); a('s_add_u32 s7, s63, s60'); a('s_lshl_b32 s7, s7, 1')
    a('v_mov_b32 v15, s7')
    a('s_lshr_b32 s64, s6, 2')
    a('s_waitcnt lgkmcnt(0)')
    a.stamp('karg')
    a(f'global_load_dwordx4 {vr(K0,4)}, v3, {sp(P_K)} nt')
    a(f'global_load_dwordx4 {vr(K1,4)}, v4, {sp(P_K)} nt')
    a(f'global_load_dwordx4 {vr(V0,4)}, v3, {sp(P_V)} nt')
    a(f'global_load_dwordx4 {vr(V1,4)}, v4, {sp(P_V)} nt')
    a(f'global_load_dwordx4 {vr(X0,4)}, v3, {sp(P_X)} nt')
    a(f'global_load_dwordx4 {vr(X1,4)}, v4, {sp(P_X)} nt')
    for i in range(4): a(f'v_mov_b32 v{H+i}, 0')
    a('s_cmp_eq_u32 s6, 0'); a('s_cbranch_scc0 L_nohalo')
    a('s_cmp_eq_u32 s5, 0'); a('s_cbranch_scc1 L_nohalo')
    a('v_cmp_gt_u32 vcc, 24, v2'); a('s_and_saveexec_b64 s[14:15], vcc')
    a('v_add_u32 v1, 0xffffe800, v3')
    a(f'global_load_dwordx4 {vr(H,4)}, v1, {sp(P_K)} nt')
    a('s_mov_b64 exec, s[14:15]')
    a.label('L_nohalo')
    a(f'global_load_dwordx2 {vr(SHW,2)}, v9, {sp(P_SHK)}')
    a('s_cmp_eq_u32 s64, 0')
    a(f's_cselect_b32 s66, s{P_DSKIP}, s{P_SSMD}')
    a(f's_cselect_b32 s67, s{P_DSKIP+1}, s{P_SSMD+1}')
    a(f'global_load_ushort v100, v12, {sp(P_LOGA)}')
    a(f'global_load_ushort v101, v12, {sp(P_AIM)}')
    a(f'global_load_ushort v102, v12, {sp(P_CRE)}')
    a(f'global_load_ushort v103, v12, {sp(P_CIM)}')
    a(f'global_load_ushort v104, v13, {sp(P_LOGDT)}')
    a(f'global_load_ushort v105, v15, s[66:67]')
    a(f'v_mov_b32 v11, {WS_EPOCH}')
    a(f'global_load_dword v107, v11, {sp(P_WS)} sc1')
    a('s_lshr_b32 s7, s2, 3'); a('s_lshl_b32 s7, s7, 10')
    a('v_lshlrev_b32 v1, 4, v2'); a('v_add_u32 v1, s7, v1')
    a('s_cmp_eq_u32 s6, 7'); a('s_cbranch_scc0 L_nopf')
    a('v_cmp_gt_u32 vcc, L_codeend-L_pc-16, v1'); a('s_and_saveexec_b64 s[14:15], vcc'); a('s_cbranch_execz L_nopf1')
    a('global_load_dwordx4 v[248:251], v1, s[76:77]')
    a.label('L_nopf1')
    a('s_mov_b64 exec, s[14:15]')
    a.label('L_nopf')

def issue_late(a):
    a(f'global_load_dwordx4 v[108:111], v14, {sp(P_SSMK)} nt')
    a(f'global_load_dwordx4 v[112:115], v14, {sp(P_SSMK)} offset:1024 nt')
    a(f'global_load_dwordx4 {vr(GX,4)}, v8, {sp(P_X)} nt')
    a(f'global_load_dwordx4 {vr(GX+4,4)}, v8, {sp(P_X)} offset:1024 nt')
    a(f'global_load_dwordx4 {vr(GW,4)}, v10, {sp(P_GW)}')
    a(f'global_load_dwordx4 {vr(GW+4,4)}, v10, {sp(P_GW)} offset:1024')

def zero_pads(a):
    for i in range(4): a(f'v_mov_b32 v{16+i}, 0')
    a('v_cmp_gt_u32 vcc, 16, v0'); a('s_and_saveexec_b64 s[14:15], vcc')
    a('s_cbranch_execz L_zi2')
    a('v_lshrrev_b32 v7, 1, v0'); a(f'v_mul_u32_u24 v7, {KPITCH}, v7')
    a('v_and_b32 v20, 1, v0'); a('v_lshl_add_u32 v7, v20, 4, v7')
    a(f'ds_write_b128 v7, v[16:19] offset:{KARR}')
    a.label('L_zi2')
    a('s_mov_b64 exec, s[14:15]')

def producer_addr(a):
    a('s_mul_i32 s13, s6, 2304'); a(f's_add_u32 s13, s13, {STG}')
    a('v_mul_u32_u24 v7, 144, v5'); a('v_lshl_add_u32 v7, v6, 4, v7')
    a('v_add_u32 v1, s13, v7')
    a(f'v_add_u32 v7, {STG}, v7')
    a('v_and_b32 v5, 3, v2'); a('v_bfe_u32 v6, v2, 2, 2'); a('v_lshrrev_b32 v20, 4, v2')
    a('s_lshr_b32 s14, s6, 2'); a('s_lshl_b32 s14, s14, 1')
    a('s_mul_i32 s15, s14, 144'); a('s_lshl_b32 s50, s11, 5'); a('s_add_u32 s15, s15, s50'); a(f's_add_u32 s15, s15, {STG}')
    a('v_lshlrev_b32 v21, 5, v20')
    a(f'v_lshl_add_u32 v{vTR}, v6, 2, v21'); a(f'v_mul_u32_u24 v{vTR}, 144, v{vTR}')
    a(f'v_lshl_add_u32 v{vTR}, v5, 3, v{vTR}'); a(f'v_add_u32 v{vTR}, s15, v{vTR}')
    a(f'v_add_u32 v{vTRK}, v21, v6'); a(f'v_mul_u32_u24 v{vTRK}, 144, v{vTRK}')
    a(f'v_lshl_add_u32 v{vTRK}, v5, 3, v{vTRK}'); a(f'v_add_u32 v{vTRK}, s15, v{vTRK}')
    a(f'v_lshlrev_b32 v{vST}, 10, v6'); a(f'v_lshl_add_u32 v{vST}, v5, 6, v{vST}'); a(f'v_lshl_add_u32 v{vST}, v20, 4, v{vST}')
    a('s_lshl_b32 s50, s11, 12'); a('s_lshl_b32 s51, s14, 8'); a('s_add_u32 s50, s50, s51')
    a(f'v_add_u32 v{vST}, s50, v{vST}')
    a('s_lshl_b32 s50, s4, 19'); a('s_lshl_b32 s51, s5, 14'); a('s_add_u32 s50, s50, s51'); a(f's_add_u32 s50, s50, {WS_U}')
    a(f's_add_u32 s52, s{P_WS}, s50'); a(f's_addc_u32 s53, s{P_WS+1}, 0')
    a('s_add_u32 s54, s52, 0x40000'); a('s_addc_u32 s55, s53, 0')

def producer(a):
    a('s_waitcnt vmcnt(8)')
    a.stamp('tiles')
    a(f'ds_write_b128 v1, {vr(K0,4)} offset:{KS+432}')
    a(f'ds_write_b128 v1, {vr(K1,4)} offset:{KS+432+1152}')
    a(f'ds_write_b128 v1, {vr(V0,4)} offset:{VS}')
    a(f'ds_write_b128 v1, {vr(V1,4)} offset:{VS+1152}')
    a(f'ds_write_b128 v1, {vr(X0,4)} offset:{XS}')
    a(f'ds_write_b128 v1, {vr(X1,4)} offset:{XS+1152}')
    a('s_cmp_eq_u32 s6, 0'); a('s_cbranch_scc0 L_nohalo2')
    a('v_cmp_gt_u32 vcc, 24, v2'); a('s_and_saveexec_b64 s[56:57], vcc')
    a(f'ds_write_b128 v7, {vr(H,4)} offset:{KS}')
    a('s_mov_b64 exec, s[56:57]')
    a.label('L_nohalo2')
    a('s_waitcnt lgkmcnt(0)')
    a('s_barrier')
    a.stamp('bar1')
    issue_late(a)
    a.stamp('late')
    a.auto_lgkm = True
    for ts in range(2):
        for e in range(8):
            a(f'ds_read_b64_tr_b16 {vr(KO+16*ts+2*e,2)}, v{vTRK} offset:{KS+(4*e+ts)*144}')
        for h in range(2):
            a(f'ds_read_b64_tr_b16 {vr(VO+4*ts+2*h,2)}, v{vTR} offset:{VS+2304*h+144*ts}')
    for ts in range(2):
        for h in range(2):
            a(f'ds_read_b64_tr_b16 {vr(XO+4*ts+2*h,2)}, v{vTR} offset:{XS+2304*h+144*ts}')
    a.stamp('trissued')
    a('s_waitcnt vmcnt(13)')
    a(f'v_alignbit_b32 v{W10}, v{SHW}, v{SHW}, 16')
    a(f'v_alignbit_b32 v{W32}, v{SHW+1}, v{SHW+1}, 16')
    for ts in range(2):
        for e in range(8):
            d=KO+16*ts+2*e
            a(f'v_dot2_f32_bf16 v{d}, v{d}, v{W32}, 0')
        for e in range(8):
            d=KO+16*ts+2*e
            a(f'v_dot2c_f32_bf16 v{d}, v{d+1}, v{W10}')
        for e2 in range(4):
            d=KO+16*ts+4*e2; vv=VO+4*ts+e2
            a(f'v_lshlrev_b32 v{d+1}, 16, v{vv}'); a(f'v_and_b32 v{d+3}, 0xffff0000, v{vv}')
            a(f'v_mul_f32 v{d}, v{d}, v{d+1}'); a(f'v_mul_f32 v{d+2}, v{d+2}, v{d+3}')
            a(f'v_cvt_pk_bf16_f32 v{KVO+4*ts+e2}, v{d}, v{d+2}')
        a(f'global_store_dwordx4 v{vST}, {vr(KVO+4*ts,4)}, s[54:55] offset:{256*ts} sc1')
    for ts in range(2):
        a(f'global_store_dwordx4 v{vST}, {vr(XO+4*ts,4)}, s[52:53] offset:{256*ts} sc1')

def publish(a):
    a('s_waitcnt vmcnt(0)')
    a('s_barrier')
    a('s_cmp_eq_u32 s6, 0'); a('s_cbranch_scc0 L_noflag')
    a('s_lshl_b32 s7, s4, 4'); a('s_add_u32 s7, s7, s5'); a('s_lshl_b32 s7, s7, 7')
    a('s_mov_b64 exec, 1')
    a('v_mov_b32 v238, s7'); a(f'v_mov_b32 v239, s{S_TAG}')
    a(f'global_store_dword v238, v239, {sp(P_WS)} sc1')
    a('v_mov_b32 v238, 0'); a('v_mov_b32 v239, 1')
    a(f'global_atomic_add v237, v238, v239, {sp(P_DBG)} sc0')
    a('s_mov_b64 exec, -1')
    a.label('L_noflag')

def bump(a):
    a('s_cmp_eq_u32 s6, 0'); a('s_cbranch_scc0 L_nobump')
    a('v_readfirstlane_b32 s7, v237')
    a('s_cmp_eq_u32 s7, 0xff'); a('s_cbranch_scc0 L_nobump')
    a('s_add_u32 s7, s75, 1')
    a('s_mov_b64 exec, 1')
    a(f'v_mov_b32 v238, {WS_EPOCH}'); a('v_mov_b32 v239, s7')
    a(f'global_store_dword v238, v239, {sp(P_WS)} sc1')
    a('s_mov_b64 exec, -1')
    a.label('L_nobump')

def gate(a):
    A=240
    a(f'v_mov_b32 v{A}, 0'); a(f'v_mov_b32 v{A+1}, 0x3f803f80')
    for i in range(8):
        a(f'v_lshlrev_b32 v{A+2}, 16, v{GX+i}'); a(f'v_and_b32 v{A+3}, 0xffff0000, v{GX+i}')
        a(f'v_lshlrev_b32 v{A+4}, 16, v{GW+i}'); a(f'v_and_b32 v{A+5}, 0xffff0000, v{GW+i}')
        a(f'v_mul_f32 v{A+2}, v{A+2}, v{A+4}'); a(f'v_mul_f32 v{A+3}, v{A+3}, v{A+5}')
        a(f'v_cvt_pk_bf16_f32 v{A+2}, v{A+2}, v{A+3}')
        a(f'v_dot2c_f32_bf16 v{A}, v{A+2}, v{A+1}')
    for m in ('quad_perm:[1,0,3,2]','quad_perm:[2,3,0,1]','row_half_mirror','row_mirror'):
        a(f'v_add_f32_dpp v{A}, v{A}, v{A} {m} row_mask:0xf bank_mask:0xf')
    for i,l in enumerate((0,16,32,48)): a(f'v_readlane_b32 s{56+i}, v{A}, {l}')
    a(f'v_mov_b32 v{A+2}, s56')
    for i in (57,58,59): a(f'v_add_f32 v{A+2}, s{i}, v{A+2}')
    a(f'v_cvt_pk_bf16_f32 v{A+2}, v{A+2}, v{A+2}'); a(f'v_and_b32 v{A+2}, 0xffff0000, v{A+2}')
    a(f'v_mul_f32 v{A+2}, 0xbfb8aa3b, v{A+2}'); a(f'v_exp_f32 v{A+2}, v{A+2}')
    a(f'v_add_f32 v{A+2}, 1.0, v{A+2}'); a(f'v_rcp_f32 v{A+2}, v{A+2}')
    a(f'v_cvt_pk_bf16_f32 v{A+2}, v{A+2}, v{A+2}'); a(f'v_and_b32 v{A+2}, 0xffff0000, v{A+2}')
    a(f'v_mov_b32 v{A+3}, s{S_TAG}')
    a('s_lshl_b32 s56, s9, 3'); a(f's_add_u32 s56, s56, {WS_G}'); a(f'v_mov_b32 v{A+4}, s56')
    a('s_mov_b64 exec, 1')
    a(f'global_store_dwordx2 v{A+4}, {vr(A+2,2)}, {sp(P_WS)} sc1')
    a('s_mov_b64 exec, -1')

def cmul(a, d, x, y, t):
    a(f'v_pk_mul_f32 {vr(t,2)}, {vr(x,2)}, {vr(y,2)} op_sel:[1,1] op_sel_hi:[1,0]')
    a(f'v_pk_fma_f32 {vr(d,2)}, {vr(x,2)}, {vr(y,2)}, {vr(t,2)} op_sel:[0,0,0] op_sel_hi:[0,1,1] neg_lo:[0,0,1]')

Y=20; E1=22; E8=24; E128=26; T=28; T2=30; R0=32; TT=48; PW=50; BF=52; AF=68; KACC=84; vTW=16; vTRD=17
def put(a,row, reg, neg=False, tmp=19):
    a(f'v_cvt_pk_bf16_f32 v{tmp}, v{reg}, {"-" if neg else ""}v{reg+1}')
    a(f'ds_write_b32 v{vTW}, v{tmp} offset:{row*TABP}')

def kgen1(a):
    for r in (100,101,102,103,104): a(f'v_lshlrev_b32 v{r}, 16, v{r}')
    a(f'v_mul_f32 v104, {LOG2E}, v104'); a(f'v_mul_f32 v100, {LOG2E}, v100')
    a('v_exp_f32 v104, v104'); a('v_exp_f32 v100, v100')
    a(f's_mul_i32 s7, s6, {TABW}'); a(f's_add_u32 s7, s7, {TAB}')
    a(f'v_lshlrev_b32 v{vTW}, 2, v2'); a(f'v_add_u32 v{vTW}, s7, v{vTW}')
    a(f'v_and_b32 v{vTRD}, 15, v2'); a(f'v_mul_u32_u24 v{vTRD}, {TABP}, v{vTRD}')
    a('v_lshrrev_b32 v18, 4, v2'); a(f'v_lshl_add_u32 v{vTRD}, v18, 4, v{vTRD}'); a(f'v_add_u32 v{vTRD}, s7, v{vTRD}')
    a('v_cvt_pk_bf16_f32 v106, v104, v100')
    a('v_lshlrev_b32 v104, 16, v106'); a('v_and_b32 v100, 0xffff0000, v106')
    a('v_mul_f32 v100, v100, v104'); a('v_mul_f32 v101, v101, v104')
    a('v_mul_f32 v100, 0xbfb8aa3b, v100'); a('v_mul_f32 v101, 0.15915494, v101')
    a('v_add_f32 v104, v104, v104')
    a(f'v_mul_f32 v{Y}, v102, v104'); a(f'v_mul_f32 v{Y+1}, v103, v104')
    a(f'v_mul_f32 v40, {flit(8.0)}, v100'); a(f'v_mul_f32 v41, {flit(8.0)}, v101')
    a(f'v_mul_f32 v42, {flit(128.0)}, v100'); a(f'v_mul_f32 v43, {flit(128.0)}, v101')
    a('v_exp_f32 v44, v100'); a('v_fract_f32 v45, v101')
    a('v_exp_f32 v40, v40'); a('v_fract_f32 v41, v41')
    a('v_exp_f32 v42, v42'); a('v_fract_f32 v43, v43')
    for (E,m,p) in ((E8,40,41),(E1,44,45),(E128,42,43)):
        a(f'v_cos_f32 v{E}, v{p}'); a(f'v_sin_f32 v{E+1}, v{p}')
    for (E,m,p) in ((E8,40,41),(E1,44,45),(E128,42,43)):
        a(f'v_mul_f32 v{E}, v{E}, v{m}'); a(f'v_mul_f32 v{E+1}, v{E+1}, v{m}')
    a(f'v_mov_b32 v{R0}, 1.0'); a(f'v_mov_b32 v{R0+1}, 0')
    a(f'v_mov_b32 v{R0+2}, v{E1}'); a(f'v_mov_b32 v{R0+3}, v{E1+1}')
    put(a,0,Y,True)
    for j in range(1,16):
        cmul(a, Y, Y, E8, T)
        if 2<=j+1<=7: cmul(a, R0+2*(j+1), R0+2*j, E1, T2)
        if j==7: cmul(a, PW, E128, E128, T2)
        put(a,j,Y,True)
    for ks in range(4): a(f'ds_read_b128 {vr(BF+4*ks,4)}, v{vTRD} offset:{64*ks}')
    for r in range(8): put(a,r, R0+2*r, tmp=18+(r&1))
    put(a,8,E128)
    for r in range(1,8):
        cmul(a, TT if r&1 else 96, E128, R0+2*r, T if r&1 else T2); put(a,8+r, TT if r&1 else 96, tmp=18+(r&1))
    for ks in range(4): a(f'ds_read_b128 {vr(AF+4*ks,4)}, v{vTRD} offset:{64*ks}')
    for ks in range(4):
        a(f'v_mfma_f32_16x16x32_bf16 {vr(KACC,4)}, {vr(AF+4*ks,4)}, {vr(BF+4*ks,4)}, ' + ('0' if ks==0 else vr(KACC,4)))

def kgen2(a):
    for aa in (2,3):
        base=4*(aa-2)
        put(a,base,PW)
        for r in range(1,4):
            cmul(a, TT if r&1 else 96, PW, R0+4*r, T if r&1 else T2); put(a,base+r, TT if r&1 else 96, tmp=18+(r&1))
        cmul(a, PW, PW, E128, T)
    for aa in (4,5,6,7):
        base=8+2*(aa-4)
        put(a,base,PW)
        cmul(a, TT, PW, R0+8, T2);
        cmul(a, 96, PW, E128, T)
        put(a,base+1,TT,tmp=18)
        a(f'v_mov_b32 v{PW}, v96'); a(f'v_mov_b32 v{PW+1}, v97')
    for ks in range(4): a(f'ds_read_b128 {vr(AF+4*ks,4)}, v{vTRD} offset:{64*ks}')
    a('v_and_b32 v30, 15, v2'); a('v_lshrrev_b32 v31, 4, v2')
    a('s_lshr_b32 s7, s6, 1'); a(f's_mul_i32 s7, s7, {KDP}'); a(f's_add_u32 s7, s7, {KD}')
    a(f's_mul_i32 s8, s62, {KDH}'); a('s_add_u32 s7, s7, s8')
    a('v_lshrrev_b32 v32, 1, v31'); a('v_lshlrev_b32 v32, 7, v32')
    a('v_and_b32 v33, 1, v31'); a('v_lshl_add_u32 v32, v33, 2, v32'); a('v_lshl_add_u32 v32, v30, 3, v32')
    a('v_lshlrev_b32 v32, 2, v32'); a('v_add_u32 v32, s7, v32')
    a('v_cmp_gt_u32 vcc, 2, v31')
    a('v_lshlrev_b32 v33, 2, v30'); a('v_lshlrev_b32 v34, 1, v30'); a('v_cndmask_b32 v33, v34, v33, vcc')
    a('v_lshl_add_u32 v33, v31, 6, v33'); a('v_lshlrev_b32 v33, 2, v33'); a('v_add_u32 v33, s7, v33')
    a('v_mov_b32 v34, 128'); a('v_cndmask_b32 v34, v34, 8, vcc'); a('v_add_u32 v34, v33, v34')
    a('v_lshl_add_u32 v35, v31, 6, v30'); a('v_lshlrev_b32 v35, 2, v35'); a('v_add_u32 v35, s7, v35')
    for ks in range(4):
        a(f'v_mfma_f32_16x16x32_bf16 {vr(KACC+4,4)}, {vr(AF+4*ks,4)}, {vr(BF+4*ks,4)}, ' + ('0' if ks==0 else vr(KACC+4,4)))
    for aa in range(8,17):
        put(a,aa-8,PW,tmp=18+(aa&1))
        if aa<16: cmul(a, PW, PW, E128, T)
    for ks in range(4): a(f'ds_read_b128 {vr(AF+4*ks,4)}, v{vTRD} offset:{64*ks}')
    for r in range(4): a(f'ds_write_b32 v32, v{KACC+r} offset:{4*r}')
    a(f'ds_write_b32 v33, v{KACC+4} offset:1024'); a(f'ds_write_b32 v33, v{KACC+5} offset:1028')
    a(f'ds_write_b32 v34, v{KACC+6} offset:1024'); a(f'ds_write_b32 v34, v{KACC+7} offset:1028')
    for ks in range(4):
        a(f'v_mfma_f32_16x16x32_bf16 {vr(KACC+8,4)}, {vr(AF+4*ks,4)}, {vr(BF+4*ks,4)}, ' + ('0' if ks==0 else vr(KACC+8,4)))
    for r in range(4): a(f'ds_write_b32 v35, v{KACC+8+r} offset:{2048+64*r}')

def ssmk_write(a):
    a('s_lshr_b32 s7, s6, 1'); a('s_add_u32 s7, s7, 4'); a(f's_mul_i32 s7, s7, {KPITCH}')
    a('s_lshl_b32 s8, s62, 11'); a('s_add_u32 s7, s7, s8')
    a('v_lshlrev_b32 v7, 4, v2'); a('v_add_u32 v7, s7, v7')
    a(f'ds_write_b128 v7, v[108:111] offset:{KARR+32}')
    a(f'ds_write_b128 v7, v[112:115] offset:{KARR+32+1024}')

def expand(a):
    a('v_lshlrev_b32 v8, 2, v0')
    for i in range(1,4): a(f'v_add_u32 v{8+i}, {i}, v8')
    for i in range(4): a(f'v_cvt_f32_u32 v{12+i}, v{8+i}')
    a('v_cvt_pk_bf16_f32 v12, v12, v13'); a('v_cvt_pk_bf16_f32 v14, v14, v15')
    a('v_lshrrev_b32 v13, 16, v12'); a('v_and_b32 v12, 0xffff, v12')
    a('v_lshrrev_b32 v15, 16, v14'); a('v_and_b32 v14, 0xffff, v14')
    a('v_cmp_gt_u32 vcc, 32, v0')
    for i in range(4): a(f'v_subrev_u32 v{12+i}, 0x4280, v{12+i}')
    for i in range(4):
        a(f'v_cndmask_b32 v{12+i}, v{12+i}, v{8+i}, vcc'); a(f'v_lshlrev_b32 v{12+i}, 2, v{12+i}')

def expand2(a):
    for ch in range(4):
        for i in range(4):
            a(f'ds_read_b32 v{20+4*ch+i}, v{12+i} offset:{KD+ch*KDP}')
            a(f'ds_read_b32 v{48+4*ch+i}, v{12+i} offset:{KD+KDH+ch*KDP}')
    a('v_lshlrev_b32 v7, 3, v0')
    for ch in range(4):
        for i in range(4): a(f'v_add_f32 v{20+4*ch+i}, v{20+4*ch+i}, v{48+4*ch+i}')
        a(f'v_cvt_pk_bf16_f32 v{40+2*ch}, v{20+4*ch}, v{21+4*ch}')
        a(f'v_cvt_pk_bf16_f32 v{41+2*ch}, v{22+4*ch}, v{23+4*ch}')
        a(f'ds_write_b64 v7, {vr(40+2*ch,2)} offset:{KARR+ch*KPITCH+32}')

ACC=128; FR=64; GR=32
def acc(j,s): return vr(ACC+(j*4+s)*4,4)
UD=32

def upad_zero(a):
    for i in range(4): a(f'v_mov_b32 v{16+i}, 0')
    a('v_cmp_gt_u32 vcc, 256, v0'); a('s_and_saveexec_b64 s[14:15], vcc')
    a('s_cbranch_execz L_up')
    a('v_lshrrev_b32 v20, 5, v0'); a(f'v_mul_u32_u24 v20, {UCC}, v20')
    a('v_bfe_u32 v21, v0, 3, 2'); a(f'v_mul_u32_u24 v21, {UPH}, v21')
    a('v_add_u32 v20, v20, v21'); a('v_and_b32 v21, 7, v0'); a('v_lshl_add_u32 v20, v21, 4, v20')
    a(f'v_add_u32 v20, {U}, v20')
    a('ds_write_b128 v20, v[16:19]')
    a.label('L_up')
    a('s_mov_b64 exec, s[14:15]')

def poll_and_load(a):
    a('s_lshl_b32 s7, s4, 4'); a('s_lshl_b32 s8, s63, 2'); a('s_add_u32 s7, s7, s8'); a('s_lshl_b32 s7, s7, 7')
    a('v_and_b32 v6, 3, v2'); a('v_lshlrev_b32 v6, 7, v6'); a('v_add_u32 v6, s7, v6')
    a('s_lshl_b32 s7, s4, 1'); a('s_add_u32 s7, s7, s64'); a('s_lshl_b32 s7, s7, 4'); a('s_lshl_b32 s8, s63, 2'); a('s_add_u32 s7, s7, s8')
    a('s_lshl_b32 s7, s7, 14'); a('s_lshl_b32 s8, s5, 10'); a('s_add_u32 s7, s7, s8'); a(f's_add_u32 s7, s7, {WS_U}')
    a(f's_add_u32 s68, s{P_WS}, s7'); a(f's_addc_u32 s69, s{P_WS+1}, 0')
    a('v_lshlrev_b32 v7, 4, v2')
    a('v_add_u32 v8, 0x4000, v7'); a('v_add_u32 v9, 0x8000, v7'); a('v_add_u32 v10, 0xc000, v7')
    a('v_lshlrev_b32 v11, 5, v0'); a(f'v_add_u32 v11, {WS_G}, v11')
    a('s_mov_b32 s13, 0')
    a.label('L_poll')
    a(f'global_load_dword v5, v6, {sp(P_WS)} sc1')
    a('s_waitcnt vmcnt(0)')
    a(f'v_cmp_ne_u32 vcc, s{S_TAG}, v5')
    a('s_cbranch_vccz L_polled')
    a('s_add_u32 s13, s13, 1')
    a('s_cmp_lt_u32 s13, 0x40000')
    a('s_cbranch_scc0 L_polled')
    a('s_sleep 1')
    a('s_branch L_poll')
    a.label('L_polled')
    for k,r in enumerate((7,8,9,10)):
        a(f'global_load_dwordx4 {vr(UD+4*k,4)}, v{r}, s[68:69] sc1')
    a(f'global_load_dwordx4 v[48:51], v11, {sp(P_WS)} sc1')
    a(f'global_load_dwordx4 v[52:55], v11, {sp(P_WS)} offset:16 sc1')

def u_write(a):
    a('v_lshrrev_b32 v16, 4, v2'); a(f'v_mul_u32_u24 v16, {UPH}, v16')
    a('v_bfe_u32 v17, v2, 2, 2'); a(f'v_mul_u32_u24 v17, {UCC}, v17')
    a('v_add_u32 v16, v16, v17'); a('v_and_b32 v17, 3, v2'); a('v_lshl_add_u32 v16, v17, 4, v16')
    a(f's_mul_i32 s7, s64, {4*UCC}'); a('s_lshl_b32 s8, s63, 8'); a('s_add_u32 s7, s7, s8'); a(f's_add_u32 s7, s7, {U+128}')
    a('v_add_u32 v16, s7, v16')
    a('s_waitcnt vmcnt(2)')
    for k in range(4): a(f'ds_write_b128 v16, {vr(UD+4*k,4)} offset:{64*k}')
    a('s_mov_b32 s13, 0')
    a.label('L_gchk')
    a('s_waitcnt vmcnt(0)')
    a(f'v_cmp_ne_u32 vcc, s{S_TAG}, v49'); a(f'v_cmp_ne_u32 s[14:15], s{S_TAG}, v51'); a('s_or_b64 vcc, vcc, s[14:15]')
    a(f'v_cmp_ne_u32 s[14:15], s{S_TAG}, v53'); a('s_or_b64 vcc, vcc, s[14:15]')
    a(f'v_cmp_ne_u32 s[14:15], s{S_TAG}, v55'); a('s_or_b64 vcc, vcc, s[14:15]')
    a('s_cmp_eq_u64 vcc, 0'); a('s_cbranch_scc1 L_gok')
    a('s_add_u32 s13, s13, 1'); a('s_cmp_lt_u32 s13, 0x40000'); a('s_cbranch_scc0 L_gok')
    a('s_sleep 1')
    a(f'global_load_dwordx4 v[48:51], v11, {sp(P_WS)} sc1')
    a(f'global_load_dwordx4 v[52:55], v11, {sp(P_WS)} offset:16 sc1')
    a('s_branch L_gchk')
    a.label('L_gok')
    a('v_mov_b32 v49, v50'); a('v_mov_b32 v50, v52'); a('v_mov_b32 v51, v54')
    a('v_lshlrev_b32 v17, 4, v0'); a(f'v_add_u32 v17, {GA}, v17')
    a('ds_write_b128 v17, v[48:51]')

def fload(a):
    a('v_and_b32 v16, 3, v2'); a('v_bfe_u32 v17, v2, 2, 2'); a('v_sub_u32 v16, v16, v17')
    a('v_lshlrev_b32 v16, 3, v16'); a('v_lshrrev_b32 v17, 4, v2'); a('v_lshlrev_b32 v17, 6, v17'); a('v_sub_u32 v16, v16, v17')
    a(f's_mul_i32 s7, s6, {KPITCH}'); a(f's_add_u32 s7, s7, {KARR+224}')
    a('v_add_u32 v16, s7, v16')
    for i in range(16):
        a(f'ds_read_b64_tr_b16 {vr(FR+4*i,2)}, v16 offset:{256*i+32}')
        a(f'ds_read_b64_tr_b16 {vr(FR+4*i+2,2)}, v16 offset:{256*i}')

XR=12; KR=16; PP=20; QQ=24; CA=(27,28,29); CB=(30,31,11)
def conv_setup(a):
    a('v_and_b32 v20, 15, v2'); a('v_lshrrev_b32 v21, 4, v2')
    a(f's_mul_i32 s7, s6, {UCC}'); a(f's_add_u32 s7, s7, {U+8}')
    a('v_lshlrev_b32 v3, 3, v20'); a('v_lshl_add_u32 v3, v21, 4, v3'); a('v_add_u32 v3, s7, v3')
    a(f's_mul_i32 s7, s63, {UCC}'); a(f's_add_u32 s7, s7, {U+128}')
    a('v_lshlrev_b32 v4, 3, v20'); a('v_lshl_add_u32 v4, v21, 1, v4'); a('v_add_u32 v4, s7, v4')
    a('s_mul_i32 s7, s64, 2304'); a('s_lshl_b32 s8, s63, 1'); a('s_add_u32 s7, s7, s8'); a(f's_add_u32 s7, s7, {EX}')
    a('v_mul_u32_u24 v5, 576, v21'); a('v_lshl_add_u32 v5, v20, 3, v5'); a('v_add_u32 v5, s7, v5')
    a('s_lshl_b32 s7, s63, 6'); a('v_add_u32 v22, s7, v2')
    a('v_mul_u32_u24 v6, 144, v20'); a('v_lshrrev_b32 v23, 4, v22'); a('v_lshl_add_u32 v6, v23, 3, v6'); a(f'v_add_u32 v6, {EX}, v6')
    a('s_lshl_b32 s7, s60, 1'); a('v_lshlrev_b32 v8, 11, v22'); a('v_add_u32 v8, s7, v8')
    a('v_lshlrev_b32 v9, 2, v22'); a(f'v_add_u32 v9, {GA}, v9')
    a('v_subrev_u32 v7, 16, v2'); a('v_add_u32 v23, 47, v2')
    a('v_cmp_gt_u32 vcc, 16, v2'); a('v_cndmask_b32 v7, v7, v23, vcc')
    a('v_cmp_eq_u32 s[70:71], 0, v2'); a('v_mov_b32 v23, 63'); a('v_cndmask_b32 v7, v7, v23, s[70:71]')
    a('v_lshlrev_b32 v7, 2, v7')
    for r in list(range(XR,XR+8))+list(CA)+list(CB): a(f'v_mov_b32 v{r}, 0')
    a(f's_mov_b32 s72, s{P_OUT}'); a(f's_mov_b32 s73, s{P_OUT+1}')

def conv(a, typ):
    def gread(q, buf):
        L=[]
        for s in range(4):
            L.append(f'ds_read_b64 {vr(GR+16*buf+4*s,2)}, v3 offset:{s*UPH+64*(q+1)}')
            L.append(f'ds_read_b64 {vr(GR+16*buf+4*s+2,2)}, v3 offset:{s*UPH+64*(q+1)+8}')
        return L
    def mfmas(q):
        buf=(q+1)&1; j0=max(0,(q+1)//2); L=[]
        for s in range(4):
            for j in range(j0,8):
                c='0' if q==-1 else acc(j,s)
                L.append(f'v_mfma_f32_16x16x32_bf16 {acc(j,s)}, {vr(FR+4*(2*j-q),4)}, {vr(GR+16*buf+4*s,4)}, {c}')
        return L
    def stage1(j):
        D=lambda s,r: f'v{ACC+(j*4+s)*4+r}'
        cin = CA if j%2==0 else CB; cout= CB if j%2==0 else CA
        E=[]; L=[]
        for r in range(4): E.append(f'ds_read_u16_d16_hi v{XR+r}, v4 offset:{r*UPH+128*j}')
        if typ==1:
            for r in range(4): E.append(f'ds_read_u16_d16_hi v{KR+r}, v4 offset:{4*UCC+r*UPH+128*j}')
        E += [f'v_add_f32 v{QQ}, {D(1,3)}, {D(2,2)}', f'v_add_f32 v{QQ+1}, {D(2,3)}, {D(3,2)}', f'v_add_f32 v{QQ}, v{QQ}, {D(3,1)}',
              f'ds_bpermute_b32 v{cout[1]}, v7, v{QQ+1}', f'ds_bpermute_b32 v{cout[2]}, v7, {D(3,3)}', f'ds_bpermute_b32 v{cout[0]}, v7, v{QQ}',
              f'v_add_f32 v{PP+1}, {D(0,1)}, {D(1,0)}', f'v_add_f32 v{PP+2}, {D(0,2)}, {D(1,1)}', f'v_add_f32 v{PP+3}, {D(0,3)}, {D(1,2)}',
              f'v_add_f32 v{PP+2}, v{PP+2}, {D(2,0)}', f'v_add_f32 v{PP+3}, v{PP+3}, {D(2,1)}', f'v_add_f32 v{PP+3}, v{PP+3}, {D(3,0)}']
        for r in range(3): L.append(f'v_cndmask_b32 v{QQ+r}, v{cout[r]}, v{cin[r]}, s[70:71]')
        L += [f'v_add_f32 v{PP}, {D(0,0)}, v{QQ}', f'v_add_f32 v{PP+1}, v{PP+1}, v{QQ+1}', f'v_add_f32 v{PP+2}, v{PP+2}, v{QQ+2}']
        L += [f'v_cvt_pk_bf16_f32 v{QQ}, v{PP}, v{PP+1}', f'v_cvt_pk_bf16_f32 v{QQ+1}, v{PP+2}, v{PP+3}',
              f'v_lshlrev_b32 v{PP}, 16, v{QQ}', f'v_and_b32 v{PP+1}, 0xffff0000, v{QQ}',
              f'v_lshlrev_b32 v{PP+2}, 16, v{QQ+1}', f'v_and_b32 v{PP+3}, 0xffff0000, v{QQ+1}']
        if typ==0:
            for r in range(4): L.append(f'v_fmac_f32 v{PP+r}, v{XR+r}, v10')
        else:
            for r in range(4): L.append(f'v_fmac_f32 v{PP+r}, v{KR+r}, v10')
            for r in range(4): L.append(f'v_mul_f32 v{PP+r}, v{PP+r}, v{XR+r}')
        L += [f'v_cvt_pk_bf16_f32 v{QQ}, v{PP}, v{PP+1}', f'v_cvt_pk_bf16_f32 v{QQ+1}, v{PP+2}, v{PP+3}']
        par=j&1
        L += [f'ds_write_b16 v5, v{QQ} offset:{par*4608}', f'ds_write_b16_d16_hi v5, v{QQ} offset:{par*4608+144}',
              f'ds_write_b16 v5, v{QQ+1} offset:{par*4608+288}', f'ds_write_b16_d16_hi v5, v{QQ+1} offset:{par*4608+432}']
        return E,L
    S2A=(0,1);
    def stage2(j):
        par=j&1
        adv=['s_add_u32 s72, s72, 0x80000','s_addc_u32 s73, s73, 0']
        if typ!=par: return [],adv
        E=[f'ds_read_b64 {vr(PP,2)}, v6 offset:{par*4608}', f'ds_read_b64 {vr(PP+2,2)}, v6 offset:{par*4608+2304}', f'ds_read_b32 v{QQ+2}, v9 offset:{1024*j}']
        L=[]
        for h in range(2):
            L += [f'v_lshlrev_b32 v0, 16, v{PP+h}', f'v_and_b32 v1, 0xffff0000, v{PP+h}',
                  f'v_lshlrev_b32 v{QQ}, 16, v{PP+2+h}', f'v_and_b32 v{QQ+1}, 0xffff0000, v{PP+2+h}',
                  f'v_sub_f32 v0, v0, v{QQ}', f'v_sub_f32 v1, v1, v{QQ+1}',
                  f'v_fmac_f32 v{QQ}, v0, v{QQ+2}', f'v_fmac_f32 v{QQ+1}, v1, v{QQ+2}',
                  f'v_cvt_pk_bf16_f32 v{PP+h}, v{QQ}, v{QQ+1}']
        L.append(f'global_store_dwordx2 v8, {vr(PP,2)}, s[72:73]')
        return E,L+adv
    def emit(mf, early, late):
        n=len(mf)
        slots=[[] for _ in range(n)]
        k=0
        for ins in early:
            slots[min(n-1,k//2)].append(ins); k+=1
        start=min(n-1,max((len(early)+1)//2+3, n-(len(late)+1)//2))
        k=0
        for ins in late:
            slots[min(n-1,start+k//2)].append(ins); k+=1
        for i in range(n):
            a(mf[i])
            for ins in slots[i]: a(ins)
    for ins in gread(-1,0): a(ins)
    for q in range(-1,15):
        early=[]; late=[]
        if q+1<=14: early += gread(q+1,(q+2)&1)
        bar=False
        if q>=1 and q%2==1:
            E,L=stage1((q-1)//2); early+=E; late+=L; bar=True
        if q>=2 and q%2==0:
            E,L=stage2((q-2)//2); early=E+early; late+=L
        emit(mfmas(q), early, late)
        if bar:
            a('s_waitcnt lgkmcnt(0)'); a('s_barrier')
        if q in (0,2,6,10,12,14): a.stamp('q%d'%q)
    E,L=stage1(7)
    for ins in E+L: a(ins)
    a('s_waitcnt lgkmcnt(0)'); a('s_barrier')
    E,L=stage2(7)
    for ins in E+L: a(ins)

def build(stamps=False):
    a=Asm(); a.stamps=stamps
    if OPT.get('sel'): a.stamp_sel=set(OPT['sel'].split(','))
    prologue(a)
    a.stamp('rt0',True); a.stamp('t0')
    issue_loads(a)
    a.stamp('issued')
    zero_pads(a)
    producer_addr(a)
    producer(a)
    a.stamp('stored')
    a('s_waitcnt vmcnt(10)')
    a('v_readfirstlane_b32 s75, v107')
    a(f's_mul_i32 s{S_TAG}, s75, 0x9e3779b1'); a(f's_add_u32 s{S_TAG}, s{S_TAG}, 0x7f4a7c15')
    a.stamp('params')
    kgen1(a)
    a.stamp('kgen1')
    publish(a)
    a.stamp('publish')
    ssmk_write(a)
    gate(a)
    a.stamp('gate')
    kgen2(a)
    a.stamp('kgen2')
    expand(a)
    a('s_waitcnt lgkmcnt(0)'); a('s_barrier')
    a.stamp('bar3')
    expand2(a)
    upad_zero(a)
    a('v_lshlrev_b32 v106, 16, v105')
    a('s_waitcnt lgkmcnt(0)'); a('s_barrier')
    a.stamp('bar4')
    a.auto_lgkm=False
    poll_and_load(a)
    bump(a)
    a.stamp('polled')
    a('v_mov_b32 v10, v106')
    fload(a)
    a.stamp('fload')
    u_write(a)
    a.stamp('uwrite')
    conv_setup(a)
    a('s_waitcnt lgkmcnt(0)'); a('s_barrier')
    a.stamp('bar5')
    a.auto_lgkm=True; a.lgkm_sync()
    a('s_cmp_eq_u32 s64, 0'); a('s_cbranch_scc0 L_convB')
    conv(a,0)
    a('s_branch L_done')
    a.label('L_convB')
    a.lgkm_sync()
    conv(a,1)
    a.label('L_done')
    a.stamp('end'); a.stamp('rt1',True); a.dump_stamps(WS_TS)
    a.label('L_end')
    a('s_endpgm')
    a.label('L_codeend')
    return a

def gen(stamps=False):
    HEAD = open('cdna_kernels/%s.s.ref' % NAME).read().split('; Override launch')[0]
    a=build(stamps)
    if stamps: HEAD += '; STAMPS ' + ','.join(k for k,v in sorted(a.stamp_names.items(), key=lambda kv: kv[1])) + '\n'
    label=NAME+'_kernel'
    out=HEAD+f'; @launch grid=(256,1,1) block=(512,1,1) lds={LDS_TOTAL}\n'
    out+='.amdgcn_target "amdgcn-amd-amdhsa--gfx950"\n.text\n'
    out+=f'.globl {label}\n.p2align 8\n.type {label},@function\n{label}:\n'+a.text()
    out+=('.section .rodata,"a"\n.p2align 6\n'
          f'.amdhsa_kernel {label}\n  .amdhsa_next_free_vgpr 256\n  .amdhsa_next_free_sgpr 100\n  .amdhsa_accum_offset 256\n'
          '  .amdhsa_group_segment_fixed_size 0\n  .amdhsa_kernarg_size 136\n  .amdhsa_user_sgpr_count 2\n'
          '  .amdhsa_user_sgpr_kernarg_segment_ptr 1\n  .amdhsa_system_sgpr_workgroup_id_x 1\n  .amdhsa_float_denorm_mode_32 3\n.end_amdhsa_kernel\n')
    return out
if __name__=='__main__':
    for x in sys.argv[2:]:
        if '=' in x: k,v=x.split('=',1); OPT[k]=v
        else: OPT[x]=True
    open(sys.argv[1],'w').write(gen('stamps' in sys.argv))
```

```python
import sys, struct
from asmlib import Asm
NAME = 'gated_mix__ssm_conv_s4d__ssm_conv_h3__prompt'
LOG2E = '0x3fb8aa3b'
WS_FLAG = 0
WS_EPOCH= 0x10000
WS_G    = 0x20000
WS_TS   = 0x40000
WS_UX   = 0x100000
WS_U    = 0x500000
P_X, P_LOGA, P_AIM, P_CRE, P_CIM, P_LOGDT, P_DSKIP, P_Q = 16,18,20,22,24,26,28,30
P_K, P_V, P_SHK, P_SSMK, P_SSMD, P_GW, P_OUT, P_DBG, P_WS = 32,34,36,38,40,42,44,46,48
def sp(n): return f's[{n}:{n+1}]'
def vr(n,c=1): return f'v{n}' if c==1 else f'v[{n}:{n+c-1}]'
def flit(x): return '0x%08x' % struct.unpack('<I', struct.pack('<f', x))[0]
KARR=0; KPITCH=4128
KD=33024; KDP=3072; KDH=12288
TAB=57600; TABP=272; TABW=16*TABP
STG=TAB+8*TABW
KS=0; VS=5040; STGW=9648
UX=STG+4*STGW
UCC=4672; UPH=1168
UK=TAB
FL=UX+4*UCC
EXA=STG
EXB=KD
LDS_TOTAL=FL+128
S_TAG=74
OPT={}

def prologue(a):
    a('s_cmp_ge_u32 s2, 256')
    a('s_cbranch_scc1 L_end')
    a('s_load_dwordx16 s[16:31], s[0:1], 0')
    a('s_load_dwordx16 s[32:47], s[0:1], 64')
    a('s_load_dwordx2 s[48:49], s[0:1], 128')
    a('s_getpc_b64 s[76:77]')
    a.label('L_pc')
    a('v_lshrrev_b32 v1, 6, v0')
    a('v_and_b32 v2, 63, v0')
    a('s_and_b32 s3, s2, 7')
    a('v_readfirstlane_b32 s6, v1')
    a('s_lshl_b32 s4, s3, 1')
    a('s_bfe_u32 s3, s2, 0x10003')
    a('s_or_b32 s4, s4, s3')
    a('s_lshr_b32 s5, s2, 4')
    a('s_lshl_b32 s60, s4, 6'); a('s_lshl_b32 s7, s5, 2'); a('s_add_u32 s60, s60, s7')
    a('s_and_b32 s63, s6, 3'); a('s_lshr_b32 s64, s6, 2')
    a('s_add_u32 s61, s63, s60')
    a('s_lshl_b32 s7, s61, 8'); a('s_lshl_b32 s8, s64, 7'); a('s_add_u32 s7, s7, s8')
    a('v_lshlrev_b32 v12, 1, v2'); a('v_add_u32 v12, s7, v12')
    a('s_lshl_b32 s8, s61, 1'); a('v_mov_b32 v13, s8')

def param_loads(a):
    a(f'global_load_ushort v100, v12, {sp(P_LOGA)}')
    a(f'global_load_ushort v104, v13, {sp(P_LOGDT)}')
    a(f'global_load_ushort v101, v12, {sp(P_AIM)}')
    a(f'global_load_ushort v102, v12, {sp(P_CRE)}')
    a(f'global_load_ushort v103, v12, {sp(P_CIM)}')

def cmul(a, d, x, y, t):
    a(f'v_pk_mul_f32 {vr(t,2)}, {vr(x,2)}, {vr(y,2)} op_sel:[1,1] op_sel_hi:[1,0]')
    a(f'v_pk_fma_f32 {vr(d,2)}, {vr(x,2)}, {vr(y,2)}, {vr(t,2)} op_sel:[0,0,0] op_sel_hi:[0,1,1] neg_lo:[0,0,1]')
Y=20; E1=22; E8=24; E128=26; T=28; T2=30; R0=32; TT=48; PW=50; BF=52; AF=68; KACC=84; vTW=16; vTRD=17; TU=96
def put(a,row, reg, neg=False, tmp=19):
    a(f'v_cvt_pk_bf16_f32 v{tmp}, v{reg}, {"-" if neg else ""}v{reg+1}')
    a(f'ds_write_b32 v{vTW}, v{tmp} offset:{row*TABP}')

def kgen(a, hook=lambda i: None):
    hook(0)
    for r in (100,104,101,102,103): a(f'v_lshlrev_b32 v{r}, 16, v{r}')
    a(f'v_mul_f32 v104, {LOG2E}, v104'); a(f'v_mul_f32 v100, {LOG2E}, v100')
    a('v_exp_f32 v104, v104'); a('v_exp_f32 v100, v100')
    a(f's_mul_i32 s7, s6, {TABW}'); a(f's_add_u32 s7, s7, {TAB}')
    a(f'v_lshlrev_b32 v{vTW}, 2, v2'); a(f'v_add_u32 v{vTW}, s7, v{vTW}')
    a(f'v_and_b32 v{vTRD}, 15, v2'); a(f'v_mul_u32_u24 v{vTRD}, {TABP}, v{vTRD}')
    a('v_lshrrev_b32 v18, 4, v2'); a(f'v_lshl_add_u32 v{vTRD}, v18, 4, v{vTRD}'); a(f'v_add_u32 v{vTRD}, s7, v{vTRD}')
    a('v_cvt_pk_bf16_f32 v106, v104, v100')
    a('v_lshlrev_b32 v104, 16, v106'); a('v_and_b32 v100, 0xffff0000, v106')
    a('v_mul_f32 v100, v100, v104'); a('v_mul_f32 v101, v101, v104')
    a('v_mul_f32 v100, 0xbfb8aa3b, v100'); a('v_mul_f32 v101, 0.15915494, v101')
    a('v_add_f32 v104, v104, v104')
    a(f'v_mul_f32 v{Y}, v102, v104'); a(f'v_mul_f32 v{Y+1}, v103, v104')
    a(f'v_mul_f32 v40, {flit(8.0)}, v100'); a(f'v_mul_f32 v41, {flit(8.0)}, v101')
    a(f'v_mul_f32 v42, {flit(128.0)}, v100'); a(f'v_mul_f32 v43, {flit(128.0)}, v101')
    a('v_exp_f32 v44, v100'); a('v_fract_f32 v45, v101')
    a('v_exp_f32 v40, v40'); a('v_fract_f32 v41, v41')
    a('v_exp_f32 v42, v42'); a('v_fract_f32 v43, v43')
    for (E,m,p) in ((E8,40,41),(E1,44,45),(E128,42,43)):
        a(f'v_cos_f32 v{E}, v{p}'); a(f'v_sin_f32 v{E+1}, v{p}')
    for (E,m,p) in ((E8,40,41),(E1,44,45),(E128,42,43)):
        a(f'v_mul_f32 v{E}, v{E}, v{m}'); a(f'v_mul_f32 v{E+1}, v{E+1}, v{m}')
    a(f'v_mov_b32 v{R0}, 1.0'); a(f'v_mov_b32 v{R0+1}, 0')
    a(f'v_mov_b32 v{R0+2}, v{E1}'); a(f'v_mov_b32 v{R0+3}, v{E1+1}')
    put(a,0,Y,True)
    for j in range(1,16):
        cmul(a, Y, Y, E8, T)
        if 2<=j+1<=7: cmul(a, R0+2*(j+1), R0+2*j, E1, T2)
        if j==7: cmul(a, PW, E128, E128, T2)
        put(a,j,Y,True)
        if j==4: hook(1)
        if j==12: hook(2)
    for ks in range(4): a(f'ds_read_b128 {vr(BF+4*ks,4)}, v{vTRD} offset:{64*ks}')
    for r in range(8): put(a,r, R0+2*r, tmp=18+(r&1))
    put(a,8,E128)
    for r in range(1,8):
        cmul(a, TT if r&1 else TU, E128, R0+2*r, T if r&1 else T2); put(a,8+r, TT if r&1 else TU, tmp=18+(r&1))
    for ks in range(4): a(f'ds_read_b128 {vr(AF+4*ks,4)}, v{vTRD} offset:{64*ks}')
    hook(3)
    for aa in (2,3):
        base=4*(aa-2)
        put(a,base,PW)
        for r in range(1,4):
            cmul(a, TT if r&1 else TU, PW, R0+4*r, T if r&1 else T2); put(a,base+r, TT if r&1 else TU, tmp=18+(r&1))
        cmul(a, PW, PW, E128, T)
        if aa==2:
            for ks in range(4):
                a(f'v_mfma_f32_16x16x32_bf16 {vr(KACC,4)}, {vr(AF+4*ks,4)}, {vr(BF+4*ks,4)}, ' + ('0' if ks==0 else vr(KACC,4)))
    for aa in (4,5,6,7):
        base=8+2*(aa-4)
        put(a,base,PW)
        cmul(a, TT, PW, R0+8, T2)
        cmul(a, TU, PW, E128, T)
        put(a,base+1,TT,tmp=18)
        a(f'v_mov_b32 v{PW}, v{TU}'); a(f'v_mov_b32 v{PW+1}, v{TU+1}')
    hook(4)
    AF2=108
    for ks in range(4): a(f'ds_read_b128 {vr(AF2+4*ks,4)}, v{vTRD} offset:{64*ks}')
    for aa in range(8,17):
        put(a,aa-8,PW,tmp=18+(aa&1))
        if aa<16: cmul(a, PW, PW, E128, T)
        if aa==10:
            for ks in range(4):
                a(f'v_mfma_f32_16x16x32_bf16 {vr(KACC+4,4)}, {vr(AF2+4*ks,4)}, {vr(BF+4*ks,4)}, ' + ('0' if ks==0 else vr(KACC+4,4)))
    for ks in range(4): a(f'ds_read_b128 {vr(AF+4*ks,4)}, v{vTRD} offset:{64*ks}')
    a('v_and_b32 v30, 15, v2'); a('v_lshrrev_b32 v31, 4, v2')
    a(f's_mul_i32 s7, s63, {KDP}'); a(f's_add_u32 s7, s7, {KD}')
    a(f's_mul_i32 s8, s64, {KDH}'); a('s_add_u32 s7, s7, s8')
    a('v_lshrrev_b32 v32, 1, v31'); a('v_lshlrev_b32 v32, 7, v32')
    a('v_and_b32 v33, 1, v31'); a('v_lshl_add_u32 v32, v33, 2, v32'); a('v_lshl_add_u32 v32, v30, 3, v32')
    a('v_lshlrev_b32 v32, 2, v32'); a('v_add_u32 v32, s7, v32')
    a('v_cmp_gt_u32 vcc, 2, v31')
    a('v_lshlrev_b32 v33, 2, v30'); a('v_lshlrev_b32 v34, 1, v30'); a('v_cndmask_b32 v33, v34, v33, vcc')
    a('v_lshl_add_u32 v33, v31, 6, v33'); a('v_lshlrev_b32 v33, 2, v33'); a('v_add_u32 v33, s7, v33')
    a('v_mov_b32 v34, 128'); a('v_cndmask_b32 v34, v34, 8, vcc'); a('v_add_u32 v34, v33, v34')
    a('v_lshl_add_u32 v35, v31, 6, v30'); a('v_lshlrev_b32 v35, 2, v35'); a('v_add_u32 v35, s7, v35')
    for r in range(4): a(f'ds_write_b32 v32, v{KACC+r} offset:{4*r}')
    a(f'ds_write_b32 v33, v{KACC+4} offset:1024'); a(f'ds_write_b32 v33, v{KACC+5} offset:1028')
    a(f'ds_write_b32 v34, v{KACC+6} offset:1024'); a(f'ds_write_b32 v34, v{KACC+7} offset:1028')
    for ks in range(4):
        a(f'v_mfma_f32_16x16x32_bf16 {vr(KACC+8,4)}, {vr(AF+4*ks,4)}, {vr(BF+4*ks,4)}, ' + ('0' if ks==0 else vr(KACC+8,4)))
    for r in range(4): a(f'ds_write_b32 v35, v{KACC+8+r} offset:{2048+64*r}')

def lds_wait(a, name, base, val, t=20):
    a(f'v_mov_b32 v{t+4}, {FL+base}')
    a('s_mov_b32 s13, 0')
    a.label(f'L_lw_{name}')
    a(f'ds_read_b128 {vr(t,4)}, v{t+4}')
    a('s_waitcnt lgkmcnt(0)')
    a(f'v_min_u32 v{t}, v{t}, v{t+1}'); a(f'v_min_u32 v{t+2}, v{t+2}, v{t+3}'); a(f'v_min_u32 v{t}, v{t}, v{t+2}')
    a(f'v_readfirstlane_b32 s7, v{t}')
    a('s_add_u32 s13, s13, 1')
    a(f's_cmp_ge_u32 s7, {val}'); a(f's_cbranch_scc1 L_lwd_{name}')
    a('s_cmp_lt_u32 s13, 0x400000'); a(f's_cbranch_scc1 L_lw_{name}')
    a.label(f'L_lwd_{name}')
def lds_signal(a, val, t=20, extra=0):
    a('s_waitcnt lgkmcnt(0)')
    a('s_lshl_b32 s7, s6, 2'); a(f's_add_u32 s7, s7, {FL+extra}')
    a(f'v_mov_b32 v{t}, s7'); a(f'v_mov_b32 v{t+1}, {val}')
    a(f'ds_write_b32 v{t}, v{t+1}')

ACC=128; FR=64; GR=32
def acc(j,s): return vr(ACC+(j*4+s)*4,4)
def fload(a, t=16):
    a(f'v_and_b32 v{t}, 3, v2'); a(f'v_bfe_u32 v{t+1}, v2, 2, 2'); a(f'v_sub_u32 v{t}, v{t}, v{t+1}')
    a(f'v_lshlrev_b32 v{t}, 3, v{t}'); a(f'v_lshrrev_b32 v{t+1}, 4, v2'); a(f'v_lshlrev_b32 v{t+1}, 6, v{t+1}'); a(f'v_sub_u32 v{t}, v{t}, v{t+1}')
    a(f's_mul_i32 s7, s6, {KPITCH}'); a(f's_add_u32 s7, s7, {KARR+224}')
    a(f'v_add_u32 v{t}, s7, v{t}')
    for i in range(16):
        a(f'ds_read_b64_tr_b16 {vr(FR+4*i,2)}, v{t} offset:{256*i+32}')
        a(f'ds_read_b64_tr_b16 {vr(FR+4*i+2,2)}, v{t} offset:{256*i}')

def zero_upads(a, base, t=16):
    for i in range(4): a(f'v_mov_b32 v{t+i}, 0')
    a(f'v_bfe_u32 v{t+4}, v2, 3, 2'); a(f'v_mul_u32_u24 v{t+4}, {UPH}, v{t+4}')
    a(f'v_and_b32 v{t+5}, 7, v2'); a(f'v_lshl_add_u32 v{t+4}, v{t+5}, 4, v{t+4}')
    a(f's_mul_i32 s7, s63, {UCC}'); a(f's_add_u32 s7, s7, {base}')
    a(f'v_add_u32 v{t+4}, s7, v{t+4}')
    a(f'ds_write_b128 v{t+4}, {vr(t,4)}')

XR=12; KR=16; PP=20; QQ=24; CA=(27,28,29); CB=(30,31,11)
def gather_addr(a):
    a('v_lshrrev_b32 v3, 2, v2'); a('v_lshlrev_b32 v3, 4, v3'); a('v_and_b32 v4, 3, v2'); a('v_add_u32 v3, v3, v4')
    a('s_lshl_b32 s7, s63, 8'); a('v_add_u32 v3, s7, v3')
    a('v_lshlrev_b32 v3, 11, v3'); a('s_lshl_b32 s7, s60, 1'); a('v_add_u32 v3, s7, v3')
def gather_issue(a, regs, half):
    base = sp(P_X) if half==0 else 's[68:69]'
    for r in range(4):
        if r==0: a(f'global_load_dwordx2 {vr(regs[0],2)}, v3, {base}')
        else:
            a(f'v_add_u32 v4, {8192*r}, v3')
            a(f'global_load_dwordx2 {vr(regs[r],2)}, v4, {base}')
def gather_write(a, regs, half, tmp, vaddr):
    L=[]
    for ch in range(4):
        d=ch>>1; sel='s58' if (ch&1)==0 else 's59'
        t=tmp+2*(ch&1)
        L.append(f'v_perm_b32 v{t}, v{regs[1]+d}, v{regs[0]+d}, {sel}')
        L.append(f'v_perm_b32 v{t+1}, v{regs[3]+d}, v{regs[2]+d}, {sel}')
        L.append(f'ds_write_b64 v{vaddr}, {vr(t,2)} offset:{ch*UCC+512*half}')
    return L

def expand_own(a, hook=lambda i: None):
    a(f's_mul_i32 s7, s63, {KDP}'); a(f's_add_u32 s7, s7, {KD}')
    a('v_lshlrev_b32 v20, 5, v2'); a('v_lshlrev_b32 v21, 4, v2'); a('v_add_u32 v21, 512, v21')
    a('v_cmp_gt_u32 vcc, 32, v2'); a('v_cndmask_b32 v20, v21, v20, vcc'); a('v_add_u32 v20, s7, v20')
    a('v_lshlrev_b32 v21, 3, v2'); a('v_add_u32 v21, s7, v21')
    a('v_lshlrev_b32 v22, 2, v2'); a('v_add_u32 v22, s7, v22')
    for h,o in ((0,0),(1,KDH)):
        a(f'ds_read_b128 {vr(32+16*h,4)}, v20 offset:{o}'); a(f'ds_read_b128 {vr(36+16*h,4)}, v20 offset:{o+16}')
        a(f'ds_read_b64 {vr(40+16*h,2)}, v21 offset:{o+384*4}'); a(f'ds_read_b32 v{42+16*h}, v21 offset:{o+384*4+8}')
        a(f'ds_read2_b32 {vr(44+16*h,2)}, v22 offset0:0 offset1:1' if False else f'ds_read_b32 v{44+16*h}, v22 offset:{o+512*4}')
        a(f'ds_read_b32 v{45+16*h}, v22 offset:{o+513*4}')
        a(f'ds_read_b32 v{46+16*h}, v22 offset:{o+576*4}'); a(f'ds_read_b32 v{47+16*h}, v22 offset:{o+577*4}')
    hook(5)
    a('v_lshlrev_b32 v23, 4, v2'); a(f's_mul_i32 s8, s63, {KPITCH}'); a(f's_add_u32 s8, s8, {KARR+32}'); a('v_add_u32 v23, s8, v23')
    a('v_and_b32 v24, 1, v2'); a('v_cmp_eq_u32 s[14:15], 1, v24')
    for r in list(range(32,43))+list(range(44,48)): a(f'v_add_f32 v{r}, v{r}, v{r+16}')
    V=lambda i: 32+i
    pat=[0,0,1,2,2,2,3,4]
    for e in range(8):
        if pat[e]==e: a(f'v_mov_b32 v{48+e}, v{V(e)}')
        else: a(f'v_cndmask_b32 v{48+e}, v{V(pat[e])}, v{V(e)}, vcc')
    for e in range(4): a(f'v_cvt_pk_bf16_f32 v{56+e}, v{48+2*e}, v{49+2*e}')
    a(f'ds_write_b128 v23, v[56:59]')
    hook(6)
    a('v_cvt_pk_bf16_f32 v56, v40, v40'); a('v_cvt_pk_bf16_f32 v57, v40, v41'); a('v_cvt_pk_bf16_f32 v58, v41, v41'); a('v_cvt_pk_bf16_f32 v59, v42, v42')
    a('s_nop 0')
    a(f'ds_write_b128 v23, v[56:59] offset:1024')
    for k,(A,B) in enumerate(((44,45),(46,47))):
        o=60 if k==0 else 48
        a(f'v_cndmask_b32 v52, v{A}, v{B}, s[14:15]')
        a(f'v_cvt_pk_bf16_f32 v{o}, v{A}, v{A}'); a(f'v_cvt_pk_bf16_f32 v{o+1}, v{A}, v{A}')
        a(f'v_cvt_pk_bf16_f32 v{o+2}, v52, v{B}'); a(f'v_cvt_pk_bf16_f32 v{o+3}, v{B}, v{B}')
        a(f'ds_write_b128 v23, {vr(o,4)} offset:{2048+1024*k}')

def conv_addr_common(a, ubase_own, exbase):
    a('v_and_b32 v20, 15, v2'); a('v_lshrrev_b32 v21, 4, v2')
    a(f's_mul_i32 s7, s63, {UCC}'); a(f's_add_u32 s8, s7, {ubase_own+8}')
    a('v_lshlrev_b32 v3, 3, v20'); a('v_lshl_add_u32 v3, v21, 4, v3'); a('v_add_u32 v3, s8, v3')
    a(f's_add_u32 s8, s7, {UX+128}')
    a('v_lshlrev_b32 v4, 3, v20'); a('v_lshl_add_u32 v4, v21, 1, v4'); a('v_add_u32 v4, s8, v4')
    a('s_lshl_b32 s8, s63, 1'); a(f's_add_u32 s8, s8, {exbase}')
    a('v_mul_u32_u24 v5, 576, v21'); a('v_lshl_add_u32 v5, v20, 3, v5'); a('v_add_u32 v5, s8, v5')
    a('v_subrev_u32 v7, 16, v2'); a('v_add_u32 v23, 47, v2')
    a('v_cmp_gt_u32 vcc, 16, v2'); a('v_cndmask_b32 v7, v7, v23, vcc')
    a('v_cmp_eq_u32 s[70:71], 0, v2'); a('v_mov_b32 v23, 63'); a('v_cndmask_b32 v7, v7, v23, s[70:71]')
    a('v_lshlrev_b32 v7, 2, v7')
    for r in list(range(XR,XR+8))+list(CA)+list(CB): a(f'v_mov_b32 v{r}, 0')

def gread(q, buf):
    L=[]
    for s in range(4):
        L.append(f'ds_read_b64 {vr(GR+16*buf+4*s,2)}, v3 offset:{s*UPH+64*(q+1)}')
        L.append(f'ds_read_b64 {vr(GR+16*buf+4*s+2,2)}, v3 offset:{s*UPH+64*(q+1)+8}')
    return L
def mfmas(q):
    buf=(q+1)&1; j0=max(0,(q+1)//2); L=[]
    for s in range(4):
        for j in range(j0,8):
            c='0' if q==-1 else acc(j,s)
            L.append(f'v_mfma_f32_16x16x32_bf16 {acc(j,s)}, {vr(FR+4*(2*j-q),4)}, {vr(GR+16*buf+4*s,4)}, {c}')
    return L
def stage1(j, typ):
    D=lambda s,r: f'v{ACC+(j*4+s)*4+r}'
    cin = CA if j%2==0 else CB; cout= CB if j%2==0 else CA
    E=[]; L=[]
    if typ!=2:
        for r in range(4): E.append(f'ds_read_u16_d16_hi v{XR+r}, v4 offset:{r*UPH+128*j}')
    if typ==1:
        for r in range(4): E.append(f'ds_read_u16_d16_hi v{KR+r}, v6 offset:{r*UPH+128*j}')
    E += [f'v_add_f32 v{QQ}, {D(1,3)}, {D(2,2)}', f'v_add_f32 v{QQ+1}, {D(2,3)}, {D(3,2)}', f'v_add_f32 v{QQ}, v{QQ}, {D(3,1)}',
          f'ds_bpermute_b32 v{cout[1]}, v7, v{QQ+1}', f'ds_bpermute_b32 v{cout[2]}, v7, {D(3,3)}', f'ds_bpermute_b32 v{cout[0]}, v7, v{QQ}',
          f'v_add_f32 v{PP+1}, {D(0,1)}, {D(1,0)}', f'v_add_f32 v{PP+2}, {D(0,2)}, {D(1,1)}', f'v_add_f32 v{PP+3}, {D(0,3)}, {D(1,2)}',
          f'v_add_f32 v{PP+2}, v{PP+2}, {D(2,0)}', f'v_add_f32 v{PP+3}, v{PP+3}, {D(2,1)}', f'v_add_f32 v{PP+3}, v{PP+3}, {D(3,0)}']
    for r in range(3): L.append(f'v_cndmask_b32 v{QQ+r}, v{cout[r]}, v{cin[r]}, s[70:71]')
    L += [f'v_add_f32 v{PP}, {D(0,0)}, v{QQ}', f'v_add_f32 v{PP+1}, v{PP+1}, v{QQ+1}', f'v_add_f32 v{PP+2}, v{PP+2}, v{QQ+2}']
    L += [f'v_cvt_pk_bf16_f32 v{QQ}, v{PP}, v{PP+1}', f'v_cvt_pk_bf16_f32 v{QQ+1}, v{PP+2}, v{PP+3}']
    if typ==0:
        L += [f'v_lshlrev_b32 v{PP}, 16, v{QQ}', f'v_and_b32 v{PP+1}, 0xffff0000, v{QQ}',
              f'v_lshlrev_b32 v{PP+2}, 16, v{QQ+1}', f'v_and_b32 v{PP+3}, 0xffff0000, v{QQ+1}']
        for r in range(4): L.append(f'v_fmac_f32 v{PP+r}, v{XR+r}, v10')
        L += [f'v_cvt_pk_bf16_f32 v{QQ}, v{PP}, v{PP+1}', f'v_cvt_pk_bf16_f32 v{QQ+1}, v{PP+2}, v{PP+3}']
    o=j*2304
    L += [f'ds_write_b16 v5, v{QQ} offset:{o}', f'ds_write_b16_d16_hi v5, v{QQ} offset:{o+144}',
          f'ds_write_b16 v5, v{QQ+1} offset:{o+288}', f'ds_write_b16_d16_hi v5, v{QQ+1} offset:{o+432}']
    return E,L
def emit(a, mf, early, late):
    n=len(mf); slots=[[] for _ in range(n)]; k=0
    for ins in early:
        slots[min(n-1,k//2)].append(ins); k+=1
    start=min(n-1,max((len(early)+1)//2+3, n-(len(late)+1)//2)); k=0
    for ins in late:
        slots[min(n-1,start+k//2)].append(ins); k+=1
    for i in range(n):
        a(mf[i])
        for ins in slots[i]: a(ins)

H1=(128,130,132,134); H2=(136,138,140,142)
XT,XO=128,144
def tile_addr(a):
    a('v_lshrrev_b32 v5, 3, v2'); a('v_and_b32 v6, 7, v2')
    a('v_lshlrev_b32 v3, 11, v5'); a('v_lshl_add_u32 v3, v6, 4, v3')
    a('s_lshl_b32 s7, s5, 2'); a('s_add_u32 s7, s7, s63'); a('s_lshl_b32 s7, s7, 16')
    a('s_lshl_b32 s8, s4, 7'); a('s_add_u32 s7, s7, s8')
    a('v_add_u32 v3, s7, v3')
def store_addr(a, v, wsoff, sb):
    a(f'v_and_b32 v{v}, 15, v2'); a(f'v_lshlrev_b32 v{v}, 12, v{v}'); a('v_lshrrev_b32 v20, 4, v2'); a(f'v_lshl_add_u32 v{v}, v20, 4, v{v}')
    a('s_lshl_b32 s50, s63, 6'); a(f'v_add_u32 v{v}, s50, v{v}')
    a('s_lshl_b32 s50, s4, 18'); a('s_lshl_b32 s51, s5, 8'); a('s_add_u32 s50, s50, s51'); a(f's_add_u32 s50, s50, {wsoff}')
    a(f's_add_u32 s{sb}, s{P_WS}, s50'); a(f's_addc_u32 s{sb+1}, s{P_WS+1}, 0')
def flag_store(a, arr, t):
    a('s_lshl_b32 s7, s4, 1');
    if arr: a('s_add_u32 s7, s7, 1')
    a('s_lshl_b32 s7, s7, 4'); a('s_add_u32 s7, s7, s5'); a('s_lshl_b32 s7, s7, 2'); a('s_add_u32 s7, s7, s63'); a('s_lshl_b32 s7, s7, 4')
    a(f'v_mov_b32 v{t}, s7'); a(f'v_mov_b32 v{t+1}, s{S_TAG}')
    a('s_mov_b64 exec, 1')
    a(f'global_store_dword v{t}, v{t+1}, {sp(P_WS)} sc1')
    a('s_mov_b64 exec, -1')
def poll(a, arr, name, va, vd):
    a('s_cmp_eq_u32 s63, 0'); a(f's_cbranch_scc0 L_pw{name}')
    a('s_lshl_b32 s7, s4, 1')
    if arr: a('s_add_u32 s7, s7, 1')
    a('s_lshl_b32 s7, s7, 10'); a(f'v_lshlrev_b32 v{va}, 4, v2'); a(f'v_add_u32 v{va}, s7, v{va}')
    a('s_mov_b32 s13, 0')
    a.label(f'L_poll{name}')
    a(f'global_load_dword v{vd}, v{va}, {sp(P_WS)} sc1')
    a('s_waitcnt vmcnt(0)')
    a(f'v_cmp_ne_u32 vcc, s{S_TAG}, v{vd}')
    a(f's_cbranch_vccz L_polled{name}')
    a('s_add_u32 s13, s13, 1'); a('s_cmp_lt_u32 s13, 0x40000'); a(f's_cbranch_scc0 L_polled{name}')
    a('s_sleep 2'); a(f's_branch L_poll{name}')
    a.label(f'L_polled{name}')
    a(f'v_mov_b32 v{va}, {FL+48+16*arr}'); a(f'v_mov_b32 v20, 1'); a('v_mov_b32 v21, 1'); a('v_mov_b32 v22, 1'); a('v_mov_b32 v23, 1')
    a(f'ds_write_b128 v{va}, v[20:23]')
    a(f's_branch L_pd{name}')
    a.label(f'L_pw{name}')
    lds_wait(a, 'p'+name, 48+16*arr, 1, t=20)
    a.label(f'L_pd{name}')
    a('s_waitcnt lgkmcnt(0)'); a.lgkm_sync()
def uload(a, wsoff, regs, ldsbase, vt, vl):
    a('s_lshl_b32 s7, s4, 18'); a('s_lshl_b32 s8, s5, 14'); a('s_add_u32 s7, s7, s8'); a('s_lshl_b32 s8, s63, 12'); a('s_add_u32 s7, s7, s8')
    a(f's_add_u32 s7, s7, {wsoff}'); a(f's_add_u32 s68, s{P_WS}, s7'); a(f's_addc_u32 s69, s{P_WS+1}, 0')
    a(f'v_lshlrev_b32 v{vt}, 4, v2')
    for h in range(4): a(f'global_load_dwordx4 {vr(regs+4*h,4)}, v{vt}, s[68:69] offset:{1024*h} {OPT.get("uld","sc1").replace("none","")}'.rstrip())
    a(f's_mul_i32 s7, s63, {UCC}'); a(f's_add_u32 s7, s7, {ldsbase+128}')
    a(f'v_and_b32 v{vl}, 3, v2'); a(f'v_mul_u32_u24 v{vl}, {UPH}, v{vl}'); a(f'v_lshrrev_b32 v{vt}, 4, v2'); a(f'v_lshl_add_u32 v{vl}, v{vt}, 6, v{vl}')
    a(f'v_bfe_u32 v{vt}, v2, 2, 2'); a(f'v_lshl_add_u32 v{vl}, v{vt}, 4, v{vl}'); a(f'v_add_u32 v{vl}, s7, v{vl}')

def ahook(a, i):
    HA=int(OPT.get('ha',2)); HB=int(OPT.get('hb',3))
    if i==HA:
        a('s_waitcnt lgkmcnt(0)')
        a('s_cmp_lg_u32 s64, 0'); a(f's_cbranch_scc1 L_ah{i}')
        a('s_waitcnt vmcnt(1)')
        for h in range(4): a(f'ds_write_b128 v6, {vr(XT+4*h,4)} offset:{1152*h}')
        for cg in range(4):
            for h in range(2): a(f'ds_read_b64_tr_b16 {vr(XO+4*cg+2*h,2)}, v7 offset:{2304*h+32*cg}')
        for cg in range(4):
            if cg: a(f'v_add_u32 v4, {65536*cg}, v8')
            a(f'global_store_dwordx4 {"v4" if cg else "v8"}, {vr(XO+4*cg,4)}, s[54:55] sc1')
        a('s_waitcnt lgkmcnt(0)')
        a.label(f'L_ah{i}')
    if i==HB:
        a('s_cmp_eq_u32 s64, 0'); a(f's_cbranch_scc1 L_bh{i}')
        for h in range(4):
            if h: a(f'v_add_u32 v4, {0x4000*h}, v3')
            a(f'global_load_dwordx4 {vr(VT+4*h,4)}, {"v4" if h else "v3"}, {sp(P_V)} nt')
        for cg in range(4): a(f'global_load_dwordx2 {vr(SHW8+2*cg,2)}, v9, {sp(P_SHK)} offset:{128*cg}')
        a(f'global_load_dword v107, v11, {sp(P_WS)} sc1')
        a.label(f'L_bh{i}')

KT,VT = 128,144
HL,SHW8=224,228
AGX,AGW,AG=224,240,172
def gate(a):
    GX=AGX; GW=AGW; A=AG
    a(f'v_mov_b32 v{A}, 0'); a(f'v_mov_b32 v{A+1}, 0'); a(f'v_mov_b32 v{A+2}, 0x3f803f80')
    for i in range(8):
        a(f'v_lshlrev_b32 v{A+4}, 16, v{GW+i}'); a(f'v_and_b32 v{A+5}, 0xffff0000, v{GW+i}')
        for rr in range(2):
            t=A+6+2*rr
            a(f'v_lshlrev_b32 v{t}, 16, v{GX+8*rr+i}'); a(f'v_and_b32 v{t+1}, 0xffff0000, v{GX+8*rr+i}')
            a(f'v_mul_f32 v{t}, v{t}, v{A+4}'); a(f'v_mul_f32 v{t+1}, v{t+1}, v{A+5}')
            a(f'v_cvt_pk_bf16_f32 v{t}, v{t}, v{t+1}')
            a(f'v_dot2c_f32_bf16 v{A+rr}, v{t}, v{A+2}')
    for m in ('quad_perm:[1,0,3,2]','quad_perm:[2,3,0,1]','row_half_mirror','row_mirror'):
        for rr in range(2): a(f'v_add_f32_dpp v{A+rr}, v{A+rr}, v{A+rr} {m} row_mask:0xf bank_mask:0xf')
    for rr in range(2):
        for i,l in enumerate((0,16,32,48)): a(f'v_readlane_b32 s{50+4*rr+i}, v{A+rr}, {l}')
    for rr in range(2):
        a(f'v_mov_b32 v{A+4+rr}, s{50+4*rr}')
        for i in range(1,4): a(f'v_add_f32 v{A+4+rr}, s{50+4*rr+i}, v{A+4+rr}')
    a('v_cmp_eq_u32 vcc, 1, v2'); a(f'v_cndmask_b32 v{A+4}, v{A+4}, v{A+5}, vcc')
    t=A+4
    a(f'v_cvt_pk_bf16_f32 v{t}, v{t}, v{t}'); a(f'v_and_b32 v{t}, 0xffff0000, v{t}')
    a(f'v_mul_f32 v{t}, 0xbfb8aa3b, v{t}'); a(f'v_exp_f32 v{t}, v{t}'); a(f'v_add_f32 v{t}, 1.0, v{t}'); a(f'v_rcp_f32 v{t}, v{t}')
    a(f'v_cvt_pk_bf16_f32 v{t}, v{t}, v{t}'); a(f'v_and_b32 v{t}, 0xffff0000, v{t}')
    a(f'v_mov_b32 v{t+1}, s{S_TAG}')
    a('s_lshl_b32 s56, s9, 3'); a(f's_add_u32 s56, s56, {WS_G}'); a(f'v_lshlrev_b32 v{A+8}, 3, v2'); a(f'v_add_u32 v{A+8}, s56, v{A+8}')
    a('s_mov_b64 exec, 3')
    a(f'global_store_dwordx2 v{A+8}, {vr(t,2)}, {sp(P_WS)} sc1')
    a('s_mov_b64 exec, -1')

def A_issue(a):
    a.auto_lgkm=False
    a(f'v_mov_b32 v11, {WS_EPOCH}')
    a(f'global_load_ushort v105, v13, {sp(P_DSKIP)}')
    for h in range(4):
        if h: a(f'v_add_u32 v4, {0x4000*h}, v3')
        a(f'global_load_dwordx4 {vr(XT+4*h,4)}, {"v4" if h else "v3"}, {sp(P_X)} nt')
    a(f'global_load_dword v107, v11, {sp(P_WS)} sc1')
    a.stamp('issued')
    a('s_cmp_eq_u32 s6, 3'); a('s_cbranch_scc0 L_nopf')
    a('s_lshr_b32 s7, s2, 3'); a('s_lshl_b32 s7, s7, 10'); a('v_lshlrev_b32 v1, 4, v2'); a('v_add_u32 v1, s7, v1')
    a('v_cmp_gt_u32 vcc, L_codeend-L_pc-16, v1'); a('s_and_saveexec_b64 s[14:15], vcc'); a('s_cbranch_execz L_nopf1')
    a('global_load_dwordx4 v[248:251], v1, s[76:77]')
    a.label('L_nopf1'); a('s_mov_b64 exec, s[14:15]')
    a.label('L_nopf')
    for i in range(4): a(f'v_mov_b32 v{16+i}, 0')
    a(f's_mul_i32 s7, s63, {KPITCH}'); a('v_and_b32 v20, 1, v2'); a('v_lshlrev_b32 v20, 4, v20'); a('v_add_u32 v20, s7, v20')
    a(f'ds_write_b128 v20, v[16:19] offset:{KARR}')
    store_addr(a, 8, WS_UX, 54)
    a(f's_mul_i32 s7, s63, {UCC}'); a(f's_add_u32 s7, s7, {UX}')
    a('v_mul_u32_u24 v7, 144, v5'); a('v_lshl_add_u32 v6, v6, 4, v7'); a('v_add_u32 v6, s7, v6')
    a('v_bfe_u32 v7, v2, 2, 2'); a('v_lshrrev_b32 v20, 4, v2'); a('v_lshl_add_u32 v7, v7, 2, v20'); a('v_mul_u32_u24 v7, 144, v7')
    a('v_and_b32 v20, 3, v2'); a('v_lshl_add_u32 v7, v20, 3, v7'); a('v_add_u32 v7, s7, v7')
    a(f's_waitcnt vmcnt(6)')

def A_rest(a):
    a('s_waitcnt vmcnt(0) lgkmcnt(0)')
    a.lgkm_sync()
    a.stamp('kgen')
    a('v_readfirstlane_b32 s75, v107')
    a(f's_mul_i32 s{S_TAG}, s75, 0x9e3779b1'); a(f's_add_u32 s{S_TAG}, s{S_TAG}, 0x7f4a7c15')
    flag_store(a, 0, 4)
    a('s_lshl_b32 s9, s2, 3'); a('s_lshl_b32 s8, s63, 1'); a('s_add_u32 s9, s9, s8')
    a('v_lshlrev_b32 v9, 4, v2'); a('s_lshl_b32 s8, s9, 11'); a('v_add_u32 v8, s8, v9'); a('v_add_u32 v4, 0x800, v8')
    a(f'global_load_dwordx4 {vr(AGX,4)}, v8, {sp(P_X)} nt'); a(f'global_load_dwordx4 {vr(AGX+4,4)}, v8, {sp(P_X)} offset:1024 nt')
    a(f'global_load_dwordx4 {vr(AGX+8,4)}, v4, {sp(P_X)} nt'); a(f'global_load_dwordx4 {vr(AGX+12,4)}, v4, {sp(P_X)} offset:1024 nt')
    a(f'global_load_dwordx4 {vr(AGW,4)}, v9, {sp(P_GW)}'); a(f'global_load_dwordx4 {vr(AGW+4,4)}, v9, {sp(P_GW)} offset:1024')
    a('v_lshlrev_b32 v10, 16, v105')
    lds_wait(a,'kd',32,1,t=20)
    a.lgkm_sync()
    a.stamp('bar1')
    expand_own(a)
    zero_upads(a, UX, t=16)
    fload(a, t=24)
    a.stamp('expand')
    a('s_waitcnt vmcnt(0)')
    gate(a)
    a.stamp('gate')
    poll(a, 0, 'x', 3, 4)
    a.stamp('xpolled')
    uload(a, WS_UX, 128, UX, 3, 6)
    conv_addr_common(a, UX, EXA)
    a('s_waitcnt vmcnt(0)')
    a.stamp('gath1')
    for h in range(4): a(f'ds_write_b128 v6, {vr(128+4*h,4)} offset:{h*256}')
    lds_signal(a, 1, t=20)
    lds_wait(a,'a1b',16,1,t=20)
    a.stamp('xready')
    a.lgkm_sync()
    for ins in gread(-1,0): a(ins)
    for q in range(-1,15):
        early=[]; late=[]
        if q+1<=14: early += gread(q+1,(q+2)&1)
        if q>=1 and q%2==1:
            E,L=stage1((q-1)//2,0); early+=E; late+=L
        emit(a, mfmas(q), early, late)
        if q in (0,6,14): a.stamp('aq%d'%q)
    E,L=stage1(7,0)
    for ins in E+L: a(ins)
    a('s_lshl_b32 s7, s63, 6'); a('v_add_u32 v22, s7, v2')
    a(f'v_lshlrev_b32 v16, 3, v22'); a(f'v_add_u32 v16, {WS_G}, v16')
    for i in range(1,4): a(f'v_add_u32 v{16+i}, {4096*i}, v16')
    a('s_lshl_b32 s7, s60, 1'); a('v_mov_b32 v6, s7')
    a(f'global_load_dwordx2 v[4:5], v6, {sp(P_SSMD)}')
    for j in range(8): a(f'global_load_dwordx2 {vr(128+2*j,2)}, v{16+(j>>1)}, {sp(P_WS)} offset:{2048*(j&1)} sc1')
    a('v_and_b32 v20, 15, v22')
    a('v_mul_u32_u24 v9, 144, v20'); a('v_lshrrev_b32 v23, 4, v22'); a('v_lshl_add_u32 v9, v23, 3, v9')
    a(f'v_add_u32 v7, {EXA}, v9'); a(f'v_add_u32 v9, {EXB}, v9')
    a('s_lshl_b32 s7, s60, 1'); a('v_lshlrev_b32 v8, 11, v22'); a('v_add_u32 v8, s7, v8')
    a('v_and_b32 v20, 3, v22'); a(f'v_mul_u32_u24 v3, {UPH}, v20'); a('v_lshrrev_b32 v20, 2, v22'); a('v_lshl_add_u32 v3, v20, 1, v3')
    a(f'v_add_u32 v6, {UK+128}, v3'); a(f'v_add_u32 v3, {UX+128}, v3')
    XP,KP,AP=64,96,144
    lds_signal(a, 2, t=20)
    for i in range(64): a(f'v_mov_b32 v{XP+i}, 0')
    a(f's_mov_b32 s72, s{P_OUT}'); a(f's_mov_b32 s73, s{P_OUT+1}')
    OSC=OPT.get('osc','')
    lds_wait(a,'a2',0,2,t=20); a.lgkm_sync()
    for j in range(8):
        for ch in range(4): a(f'ds_read_u16_d16_hi v{XP+4*j+ch}, v3 offset:{ch*UCC+128*j}')
        a(f'ds_read_b64 {vr(AP+2*j,2)}, v7 offset:{j*2304}')
    a('s_waitcnt vmcnt(0)')
    a('v_lshlrev_b32 v60, 16, v4'); a('v_and_b32 v61, 0xffff0000, v4'); a('v_lshlrev_b32 v62, 16, v5'); a('v_and_b32 v63, 0xffff0000, v5')
    a.stamp('gok')
    lds_wait(a,'kvl',16,2,t=20); a.lgkm_sync()
    for j in range(8):
        for ch in range(4): a(f'ds_read_u16_d16_hi v{KP+4*j+ch}, v6 offset:{ch*UCC+128*j}')
    for j in range(8):
        a('s_mov_b32 s13, 0')
        a.label(f'L_gc{j}')
        a(f'v_cmp_ne_u32 vcc, s{S_TAG}, v{129+2*j}'); a(f's_cbranch_vccz L_gok{j}')
        a('s_add_u32 s13, s13, 1'); a('s_cmp_lt_u32 s13, 0x10000'); a(f's_cbranch_scc0 L_gok{j}')
        a('s_sleep 8')
        a(f'global_load_dwordx2 {vr(128+2*j,2)}, v{16+(j>>1)}, {sp(P_WS)} offset:{2048*(j&1)} sc1'); a('s_waitcnt vmcnt(0)')
        a(f's_branch L_gc{j}')
        a.label(f'L_gok{j}')
        for h in range(2):
            a(f'v_lshlrev_b32 v{40+2*h}, 16, v{AP+2*j+h}'); a(f'v_and_b32 v{41+2*h}, 0xffff0000, v{AP+2*j+h}')
        lds_wait(a,f't{j}',16,j+3,t=20); a.lgkm_sync()
        a(f'ds_read_b64 {vr(34,2)}, v9 offset:{j*2304}')
        for h in range(2):
            a(f'v_lshlrev_b32 v{44+2*h}, 16, v{34+h}'); a(f'v_and_b32 v{45+2*h}, 0xffff0000, v{34+h}')
        for i in range(4): a(f'v_fmac_f32 v{44+i}, v{KP+4*j+i}, v{60+i}')
        for i in range(4): a(f'v_mul_f32 v{44+i}, v{44+i}, v{XP+4*j+i}')
        a('v_cvt_pk_bf16_f32 v36, v44, v45'); a('v_cvt_pk_bf16_f32 v37, v46, v47')
        for h in range(2):
            a(f'v_lshlrev_b32 v{44+2*h}, 16, v{36+h}'); a(f'v_and_b32 v{45+2*h}, 0xffff0000, v{36+h}')
        for i in range(4): a(f'v_sub_f32 v{40+i}, v{40+i}, v{44+i}')
        for i in range(4): a(f'v_fmac_f32 v{44+i}, v{40+i}, v{128+2*j}')
        o=48+2*(j&1)
        a(f'v_cvt_pk_bf16_f32 v{o}, v44, v45'); a(f'v_cvt_pk_bf16_f32 v{o+1}, v46, v47')
        a(f'global_store_dwordx2 v8, {vr(o,2)}, s[72:73] {OSC}'.rstrip())
        a('s_add_u32 s72, s72, 0x80000'); a('s_addc_u32 s73, s73, 0')
        if j in (0,3,6): a.stamp('st2_%d'%j)

KT,VT,H = 128,144,160
SHW=164; W10,W32,vTR,vTRK,vST = 166,167,168,169,170
KO,VO,KVO = 176,208,216
GX,GW,SK = 224,240,108
HL,SHW8=224,228
def B_issue(a):
    a.auto_lgkm=False
    a('s_lshl_b32 s12, s4, 9')
    a('v_and_b32 v11, 15, v2'); a('v_lshlrev_b32 v9, 3, v11'); a('v_add_u32 v9, s12, v9')
    a(f'v_mov_b32 v11, {WS_EPOCH}')
    for i in range(4): a(f'v_mov_b32 v{HL+i}, 0')
    a(f'global_load_ushort v105, v13, {sp(P_SSMD)}')
    for h in range(4):
        if h: a(f'v_add_u32 v4, {0x4000*h}, v3')
        r = 'v3' if h==0 else 'v4'
        a(f'global_load_dwordx4 {vr(KT+4*h,4)}, {r}, {sp(P_K)} nt')
    a('s_add_u32 s7, s5, s63'); a('s_cmp_eq_u32 s7, 0'); a('s_cbranch_scc1 L_nohalo')
    a('v_cmp_gt_u32 vcc, 24, v2'); a('s_and_saveexec_b64 s[14:15], vcc')
    a('v_add_u32 v1, 0xffffe800, v3')
    a(f'global_load_dwordx4 {vr(HL,4)}, v1, {sp(P_K)} nt')
    a('s_mov_b64 exec, s[14:15]')
    a.label('L_nohalo')
    a.stamp('issued')
def B_calc(a):
    a(f's_mul_i32 s13, s63, {STGW}'); a(f's_add_u32 s13, s13, {STG}')
    a('v_mul_u32_u24 v7, 144, v5'); a('v_lshl_add_u32 v7, v6, 4, v7')
    a('v_add_u32 v98, s13, v7')
    a('v_and_b32 v5, 3, v2'); a('v_bfe_u32 v6, v2, 2, 2'); a('v_lshrrev_b32 v20, 4, v2')
    a(f'v_lshl_add_u32 v{vTR}, v6, 2, v20'); a(f'v_mul_u32_u24 v{vTR}, 144, v{vTR}')
    a(f'v_lshl_add_u32 v{vTR}, v5, 3, v{vTR}'); a(f'v_add_u32 v{vTR}, s13, v{vTR}')
    a(f'v_add_u32 v{vTRK}, v6, v20'); a(f'v_mul_u32_u24 v{vTRK}, 144, v{vTRK}')
    a(f'v_lshl_add_u32 v{vTRK}, v5, 3, v{vTRK}'); a(f'v_add_u32 v{vTRK}, s13, v{vTRK}')
    store_addr(a, vST, WS_U, 54)
    for i in range(4): a(f'v_mov_b32 v{16+i}, 0')
    a(f's_mul_i32 s8, s6, {KPITCH}'); a('v_and_b32 v20, 1, v2'); a('v_lshlrev_b32 v20, 4, v20'); a('v_add_u32 v20, s8, v20')
    a(f'ds_write_b128 v20, v[16:19] offset:{KARR}')
    a('s_lshl_b32 s8, s61, 12'); a('v_lshlrev_b32 v10, 4, v2'); a('v_add_u32 v14, s8, v10')
    a('s_lshl_b32 s9, s2, 3'); a('s_lshl_b32 s8, s63, 1'); a('s_add_u32 s9, s9, s8')
    a('s_lshl_b32 s8, s9, 11'); a('v_add_u32 v8, s8, v10')
    a('s_waitcnt vmcnt(5)')
def B_rest(a):
    a('s_waitcnt lgkmcnt(0)')
    a.stamp('kgen')
    lds_signal(a,1,t=20,extra=16)
    a.lgkm_sync()
    a('s_waitcnt vmcnt(0)')
    a.stamp('tiles')
    for h in range(4):
        a(f'ds_write_b128 v98, {vr(KT+4*h,4)} offset:{KS+432+1152*h}')
        a(f'ds_write_b128 v98, {vr(VT+4*h,4)} offset:{VS+1152*h}')
    a('v_cmp_gt_u32 vcc, 24, v2'); a('s_and_saveexec_b64 s[56:57], vcc')
    a(f'ds_write_b128 v98, {vr(HL,4)} offset:{KS}')
    a('s_mov_b64 exec, s[56:57]')
    a('v_readfirstlane_b32 s75, v107')
    a(f's_mul_i32 s{S_TAG}, s75, 0x9e3779b1'); a(f's_add_u32 s{S_TAG}, s{S_TAG}, 0x7f4a7c15')
    for i in range(8): a(f'v_alignbit_b32 v{SHW8+i}, v{SHW8+i}, v{SHW8+i}, 16')
    for pair in range(2):
        for ts in range(2):
            cg=2*pair+ts
            for e in range(8): a(f'ds_read_b64_tr_b16 {vr(KO+16*ts+2*e,2)}, v{vTRK} offset:{KS+576*e+32*cg}')
            for h in range(2): a(f'ds_read_b64_tr_b16 {vr(VO+4*ts+2*h,2)}, v{vTR} offset:{VS+2304*h+32*cg}')
        for ts in range(2):
            cg=2*pair+ts; W10=SHW8+2*cg; W32=SHW8+2*cg+1
            for e in range(8):
                d=KO+16*ts+2*e; a(f'v_dot2_f32_bf16 v{d}, v{d}, v{W32}, 0')
            for e in range(8):
                d=KO+16*ts+2*e; a(f'v_dot2c_f32_bf16 v{d}, v{d+1}, v{W10}')
            for e2 in range(4):
                d=KO+16*ts+4*e2; vv=VO+4*ts+e2
                a(f'v_lshlrev_b32 v{d+1}, 16, v{vv}'); a(f'v_and_b32 v{d+3}, 0xffff0000, v{vv}')
                a(f'v_mul_f32 v{d}, v{d}, v{d+1}'); a(f'v_mul_f32 v{d+2}, v{d+2}, v{d+3}')
                a(f'v_cvt_pk_bf16_f32 v{KVO+4*ts+e2}, v{d}, v{d+2}')
            if cg: a(f'v_add_u32 v4, {65536*cg}, v{vST}')
            a(f'global_store_dwordx4 {"v4" if cg else "v%d"%vST}, {vr(KVO+4*ts,4)}, s[54:55] sc1')
    a.stamp('stored')
    lds_signal(a,1,t=20)
    for h in range(4): a(f'global_load_dwordx4 {vr(SK+4*h,4)}, v14, {sp(P_SSMK)} offset:{1024*h} nt')
    a('s_waitcnt vmcnt(4)')
    flag_store(a, 1, 172)
    a.stamp('flag')
    a('s_waitcnt vmcnt(1)')
    a(f's_mul_i32 s7, s6, {KPITCH}'); a('v_add_u32 v7, s7, v10')
    for h in range(4): a(f'ds_write_b128 v7, {vr(SK+4*h,4)} offset:{KARR+32+1024*h}')
    fload(a, t=16)
    a.stamp('fload')
    a.auto_lgkm=False
    poll(a, 1, 'k', 6, 5)
    a.stamp('polled')
    uload(a, WS_U, GR, UK, 7, 0)
    conv_addr_common(a, UK, EXB)
    lds_wait(a,'b1',0,1,t=20)
    zero_upads(a, UK)
    a('s_cmp_eq_u32 s6, 4'); a('s_cbranch_scc0 L_noarr')
    lds_wait(a,'arr',16,1,t=20)
    a('s_mov_b64 exec, 1'); a('v_mov_b32 v9, 0'); a('v_mov_b32 v1, 1')
    a(f'global_atomic_add v8, v9, v1, {sp(P_DBG)} sc0')
    a('s_mov_b64 exec, -1')
    a('s_waitcnt vmcnt(1)'); a('s_branch L_arrd')
    a.label('L_noarr')
    a('s_waitcnt vmcnt(0)')
    a.label('L_arrd')
    for h in range(4): a(f'ds_write_b128 v0, {vr(GR+4*h,4)} offset:{h*256}')
    a('s_lshl_b32 s7, s6, 2'); a(f's_add_u32 s7, s7, {FL}'); a('v_mov_b32 v6, s7')
    a('v_mov_b32 v4, 2'); a('ds_write_b32 v6, v4')
    a.stamp('uwrite')
    a.auto_lgkm=True; a.lgkm_sync()
    a('s_waitcnt lgkmcnt(0)')
    def tsig(j):
        a(f'v_mov_b32 v4, {j+3}'); a('ds_write_b32 v6, v4')
    for ins in gread(-1,0): a(ins)
    for q in range(-1,15):
        early=[]; late=[]; bar=False
        if q+1<=14: early += gread(q+1,(q+2)&1)
        if q>=1 and q%2==1:
            E,L=stage1((q-1)//2,2); early+=E; late+=L; bar=True
        emit(a, mfmas(q), early, late)
        if bar: tsig((q-1)//2)
        if q in (0,2,6,10,14): a.stamp('bq%d'%q)
    E,L=stage1(7,2)
    for ins in E+L: a(ins)
    tsig(7)
    a('s_waitcnt lgkmcnt(0)')
    a('s_cmp_eq_u32 s6, 4'); a('s_cbranch_scc0 L_nobump')
    a('s_waitcnt vmcnt(0)')
    a('v_readfirstlane_b32 s7, v8'); a('s_cmp_eq_u32 s7, 0xff'); a('s_cbranch_scc0 L_nobump')
    a('s_add_u32 s7, s75, 1'); a('s_mov_b64 exec, 1')
    a(f'v_mov_b32 v9, {WS_EPOCH}'); a('v_mov_b32 v1, s7')
    a(f'global_store_dword v9, v1, {sp(P_WS)} sc1')
    a('s_mov_b64 exec, -1')
    a.label('L_nobump')

def build(stamps=False):
    a=Asm(); a.stamps=stamps
    if OPT.get('sel'): a.stamp_sel=set(OPT['sel'].split(','))
    prologue(a)
    a.stamp('rt0',True); a.stamp('t0')
    for i in range(4): a(f'v_mov_b32 v{16+i}, 0')
    a('v_and_b32 v20, 7, v2'); a('v_lshlrev_b32 v20, 4, v20'); a(f'v_add_u32 v20, {FL}, v20')
    a('ds_write_b128 v20, v[16:19]')
    tile_addr(a)
    a('s_waitcnt lgkmcnt(0)')
    a.stamp('karg')
    param_loads(a)
    a('s_barrier')
    a('s_cmp_eq_u32 s64, 0'); a('s_cbranch_scc1 L_Aissue')
    B_issue(a)
    a('s_branch L_Bcalc')
    a.label('L_Aissue'); a.hist=[]
    A_issue(a)
    a('s_branch L_kgen')
    a.label('L_Bcalc'); a.hist=[]
    B_calc(a)
    a.label('L_kgen')
    a.stamp('params')
    a.auto_lgkm=True; a.lgkm_sync()
    a('s_waitcnt lgkmcnt(0)')
    kgen(a, lambda i: ahook(a,i))
    a('s_cmp_eq_u32 s64, 0'); a('s_cbranch_scc0 L_Brest')
    dq=list(a.dsq)
    A_rest(a)
    a('s_branch L_done')
    a.label('L_Brest')
    a.hist=[]; a.auto_lgkm=True; a.dsq=dq
    B_rest(a)
    a.label('L_done')
    a.auto_lgkm=False
    a.stamp('end'); a.stamp('rt1',True); a.dump_stamps(WS_TS)
    a.label('L_end')
    a('s_endpgm')
    a.label('L_codeend')
    return a

def gen(stamps=False):
    HEAD = open('cdna_kernels/%s.s.ref' % NAME).read().split('; Override launch')[0]
    a=build(stamps)
    if stamps: HEAD += '; STAMPS ' + ','.join(k for k,v in sorted(a.stamp_names.items(), key=lambda kv: kv[1])) + '\n'
    label=NAME+'_kernel'
    out=HEAD+f'; @launch grid=(256,1,1) block=(512,1,1) lds={LDS_TOTAL}\n'
    out+='.amdgcn_target "amdgcn-amd-amdhsa--gfx950"\n.text\n'
    out+=f'.globl {label}\n.p2align 8\n.type {label},@function\n{label}:\n'+a.text()
    out+=('.section .rodata,"a"\n.p2align 6\n'
          f'.amdhsa_kernel {label}\n  .amdhsa_next_free_vgpr 256\n  .amdhsa_next_free_sgpr 100\n  .amdhsa_accum_offset 256\n'
          '  .amdhsa_group_segment_fixed_size 0\n  .amdhsa_kernarg_size 136\n  .amdhsa_user_sgpr_count 2\n'
          '  .amdhsa_user_sgpr_kernarg_segment_ptr 1\n  .amdhsa_system_sgpr_workgroup_id_x 1\n  .amdhsa_float_denorm_mode_32 3\n.end_amdhsa_kernel\n')
    return out
if __name__=='__main__':
    for x in sys.argv[2:]:
        if '=' in x: k,v=x.split('=',1); OPT[k]=v
        else: OPT[x]=True
    open(sys.argv[1],'w').write(gen('stamps' in sys.argv))
```

```python
import sys, struct
from asmlib import Asm
NAME = 'gated_mix__ssm_conv_s4d__ssm_conv_h3__prompt'
LOG2E = '0x3fb8aa3b'
WS_FLAG = 0
WS_EPOCH= 0x10000
WS_G    = 0x20000
WS_TS   = 0x40000
WS_UX   = 0x100000
WS_U    = 0x500000
P_X, P_LOGA, P_AIM, P_CRE, P_CIM, P_LOGDT, P_DSKIP, P_Q = 16,18,20,22,24,26,28,30
P_K, P_V, P_SHK, P_SSMK, P_SSMD, P_GW, P_OUT, P_DBG, P_WS = 32,34,36,38,40,42,44,46,48
def sp(n): return f's[{n}:{n+1}]'
def vr(n,c=1): return f'v{n}' if c==1 else f'v[{n}:{n+c-1}]'
def flit(x): return '0x%08x' % struct.unpack('<I', struct.pack('<f', x))[0]
KARR=0; KPITCH=4128
KD=33024; KDP=3072; KDH=12288
TAB=57600; TABP=272; TABW=16*TABP
STG=TAB+8*TABW
KS=0; VS=5040; STGW=9648
UX=STG+4*STGW
UCC=4672; UPH=1168
UK=TAB
FL=UX+4*UCC
EXA=STG
EXB=KD
LDS_TOTAL=FL+128
S_TAG=74
OPT={}

def prologue(a):
    a('s_cmp_ge_u32 s2, 256')
    a('s_cbranch_scc1 L_end')
    a('s_load_dwordx16 s[16:31], s[0:1], 0')
    a('s_load_dwordx16 s[32:47], s[0:1], 64')
    a('s_load_dwordx2 s[48:49], s[0:1], 128')
    a('s_getpc_b64 s[76:77]')
    a.label('L_pc')
    a('v_lshrrev_b32 v1, 6, v0')
    a('v_and_b32 v2, 63, v0')
    a('s_and_b32 s3, s2, 7')
    a('v_readfirstlane_b32 s6, v1')
    a('s_lshl_b32 s4, s3, 1')
    a('s_bfe_u32 s3, s2, 0x10003')
    a('s_or_b32 s4, s4, s3')
    a('s_lshr_b32 s5, s2, 4')
    a('s_lshl_b32 s60, s4, 6'); a('s_lshl_b32 s7, s5, 2'); a('s_add_u32 s60, s60, s7')
    a('s_and_b32 s63, s6, 3'); a('s_lshr_b32 s64, s6, 2')
    a('s_add_u32 s61, s63, s60')
    a('s_lshl_b32 s7, s61, 8'); a('s_lshl_b32 s8, s64, 7'); a('s_add_u32 s7, s7, s8')
    a('v_lshlrev_b32 v12, 1, v2'); a('v_add_u32 v12, s7, v12')
    a('s_lshl_b32 s8, s61, 1'); a('v_mov_b32 v13, s8')

def param_loads(a):
    a(f'global_load_ushort v100, v12, {sp(P_LOGA)}')
    a(f'global_load_ushort v104, v13, {sp(P_LOGDT)}')
    a(f'global_load_ushort v101, v12, {sp(P_AIM)}')
    a(f'global_load_ushort v102, v12, {sp(P_CRE)}')
    a(f'global_load_ushort v103, v12, {sp(P_CIM)}')

def cmul(a, d, x, y, t):
    a(f'v_pk_mul_f32 {vr(t,2)}, {vr(x,2)}, {vr(y,2)} op_sel:[1,1] op_sel_hi:[1,0]')
    a(f'v_pk_fma_f32 {vr(d,2)}, {vr(x,2)}, {vr(y,2)}, {vr(t,2)} op_sel:[0,0,0] op_sel_hi:[0,1,1] neg_lo:[0,0,1]')
Y=20; E1=22; E8=24; E128=26; T=28; T2=30; R0=32; TT=48; PW=50; BF=52; AF=68; KACC=84; vTW=16; vTRD=17; TU=96
def put(a,row, reg, neg=False, tmp=19):
    a(f'v_cvt_pk_bf16_f32 v{tmp}, v{reg}, {"-" if neg else ""}v{reg+1}')
    a(f'ds_write_b32 v{vTW}, v{tmp} offset:{row*TABP}')

def kgen(a, hook=lambda i: None):
    hook(0)
    for r in (100,104,101,102,103): a(f'v_lshlrev_b32 v{r}, 16, v{r}')
    a(f'v_mul_f32 v104, {LOG2E}, v104'); a(f'v_mul_f32 v100, {LOG2E}, v100')
    a('v_exp_f32 v104, v104'); a('v_exp_f32 v100, v100')
    a(f's_mul_i32 s7, s6, {TABW}'); a(f's_add_u32 s7, s7, {TAB}')
    a(f'v_lshlrev_b32 v{vTW}, 2, v2'); a(f'v_add_u32 v{vTW}, s7, v{vTW}')
    a(f'v_and_b32 v{vTRD}, 15, v2'); a(f'v_mul_u32_u24 v{vTRD}, {TABP}, v{vTRD}')
    a('v_lshrrev_b32 v18, 4, v2'); a(f'v_lshl_add_u32 v{vTRD}, v18, 4, v{vTRD}'); a(f'v_add_u32 v{vTRD}, s7, v{vTRD}')
    a('v_cvt_pk_bf16_f32 v106, v104, v100')
    a('v_lshlrev_b32 v104, 16, v106'); a('v_and_b32 v100, 0xffff0000, v106')
    a('v_mul_f32 v100, v100, v104'); a('v_mul_f32 v101, v101, v104')
    a('v_mul_f32 v100, 0xbfb8aa3b, v100'); a('v_mul_f32 v101, 0.15915494, v101')
    a('v_add_f32 v104, v104, v104')
    a(f'v_mul_f32 v{Y}, v102, v104'); a(f'v_mul_f32 v{Y+1}, v103, v104')
    a(f'v_mul_f32 v40, {flit(8.0)}, v100'); a(f'v_mul_f32 v41, {flit(8.0)}, v101')
    a(f'v_mul_f32 v42, {flit(128.0)}, v100'); a(f'v_mul_f32 v43, {flit(128.0)}, v101')
    a('v_exp_f32 v44, v100'); a('v_fract_f32 v45, v101')
    a('v_exp_f32 v40, v40'); a('v_fract_f32 v41, v41')
    a('v_exp_f32 v42, v42'); a('v_fract_f32 v43, v43')
    for (E,m,p) in ((E8,40,41),(E1,44,45),(E128,42,43)):
        a(f'v_cos_f32 v{E}, v{p}'); a(f'v_sin_f32 v{E+1}, v{p}')
    for (E,m,p) in ((E8,40,41),(E1,44,45),(E128,42,43)):
        a(f'v_mul_f32 v{E}, v{E}, v{m}'); a(f'v_mul_f32 v{E+1}, v{E+1}, v{m}')
    a(f'v_mov_b32 v{R0}, 1.0'); a(f'v_mov_b32 v{R0+1}, 0')
    a(f'v_mov_b32 v{R0+2}, v{E1}'); a(f'v_mov_b32 v{R0+3}, v{E1+1}')
    put(a,0,Y,True)
    for j in range(1,16):
        cmul(a, Y, Y, E8, T)
        if 2<=j+1<=7: cmul(a, R0+2*(j+1), R0+2*j, E1, T2)
        if j==7: cmul(a, PW, E128, E128, T2)
        put(a,j,Y,True)
        if j==4: hook(1)
        if j==12: hook(2)
    for ks in range(4): a(f'ds_read_b128 {vr(BF+4*ks,4)}, v{vTRD} offset:{64*ks}')
    for r in range(8): put(a,r, R0+2*r, tmp=18+(r&1))
    put(a,8,E128)
    for r in range(1,8):
        cmul(a, TT if r&1 else TU, E128, R0+2*r, T if r&1 else T2); put(a,8+r, TT if r&1 else TU, tmp=18+(r&1))
    for ks in range(4): a(f'ds_read_b128 {vr(AF+4*ks,4)}, v{vTRD} offset:{64*ks}')
    hook(3)
    for aa in (2,3):
        base=4*(aa-2)
        put(a,base,PW)
        for r in range(1,4):
            cmul(a, TT if r&1 else TU, PW, R0+4*r, T if r&1 else T2); put(a,base+r, TT if r&1 else TU, tmp=18+(r&1))
        cmul(a, PW, PW, E128, T)
        if aa==2:
            for ks in range(4):
                a(f'v_mfma_f32_16x16x32_bf16 {vr(KACC,4)}, {vr(AF+4*ks,4)}, {vr(BF+4*ks,4)}, ' + ('0' if ks==0 else vr(KACC,4)))
    for aa in (4,5,6,7):
        base=8+2*(aa-4)
        put(a,base,PW)
        cmul(a, TT, PW, R0+8, T2)
        cmul(a, TU, PW, E128, T)
        put(a,base+1,TT,tmp=18)
        a(f'v_mov_b32 v{PW}, v{TU}'); a(f'v_mov_b32 v{PW+1}, v{TU+1}')
    hook(4)
    AF2=108
    for ks in range(4): a(f'ds_read_b128 {vr(AF2+4*ks,4)}, v{vTRD} offset:{64*ks}')
    for aa in range(8,17):
        put(a,aa-8,PW,tmp=18+(aa&1))
        if aa<16: cmul(a, PW, PW, E128, T)
        if aa==10:
            for ks in range(4):
                a(f'v_mfma_f32_16x16x32_bf16 {vr(KACC+4,4)}, {vr(AF2+4*ks,4)}, {vr(BF+4*ks,4)}, ' + ('0' if ks==0 else vr(KACC+4,4)))
    for ks in range(4): a(f'ds_read_b128 {vr(AF+4*ks,4)}, v{vTRD} offset:{64*ks}')
    a('v_and_b32 v30, 15, v2'); a('v_lshrrev_b32 v31, 4, v2')
    a(f's_mul_i32 s7, s63, {KDP}'); a(f's_add_u32 s7, s7, {KD}')
    a(f's_mul_i32 s8, s64, {KDH}'); a('s_add_u32 s7, s7, s8')
    a('v_lshrrev_b32 v32, 1, v31'); a('v_lshlrev_b32 v32, 7, v32')
    a('v_and_b32 v33, 1, v31'); a('v_lshl_add_u32 v32, v33, 2, v32'); a('v_lshl_add_u32 v32, v30, 3, v32')
    a('v_lshlrev_b32 v32, 2, v32'); a('v_add_u32 v32, s7, v32')
    a('v_cmp_gt_u32 vcc, 2, v31')
    a('v_lshlrev_b32 v33, 2, v30'); a('v_lshlrev_b32 v34, 1, v30'); a('v_cndmask_b32 v33, v34, v33, vcc')
    a('v_lshl_add_u32 v33, v31, 6, v33'); a('v_lshlrev_b32 v33, 2, v33'); a('v_add_u32 v33, s7, v33')
    a('v_mov_b32 v34, 128'); a('v_cndmask_b32 v34, v34, 8, vcc'); a('v_add_u32 v34, v33, v34')
    a('v_lshl_add_u32 v35, v31, 6, v30'); a('v_lshlrev_b32 v35, 2, v35'); a('v_add_u32 v35, s7, v35')
    for r in range(4): a(f'ds_write_b32 v32, v{KACC+r} offset:{4*r}')
    a(f'ds_write_b32 v33, v{KACC+4} offset:1024'); a(f'ds_write_b32 v33, v{KACC+5} offset:1028')
    a(f'ds_write_b32 v34, v{KACC+6} offset:1024'); a(f'ds_write_b32 v34, v{KACC+7} offset:1028')
    for ks in range(4):
        a(f'v_mfma_f32_16x16x32_bf16 {vr(KACC+8,4)}, {vr(AF+4*ks,4)}, {vr(BF+4*ks,4)}, ' + ('0' if ks==0 else vr(KACC+8,4)))
    for r in range(4): a(f'ds_write_b32 v35, v{KACC+8+r} offset:{2048+64*r}')

def lds_wait(a, name, base, val, t=20):
    a(f'v_mov_b32 v{t+4}, {FL+base}')
    a('s_mov_b32 s13, 0')
    a.label(f'L_lw_{name}')
    a(f'ds_read_b128 {vr(t,4)}, v{t+4}')
    a('s_waitcnt lgkmcnt(0)')
    a(f'v_min_u32 v{t}, v{t}, v{t+1}'); a(f'v_min_u32 v{t+2}, v{t+2}, v{t+3}'); a(f'v_min_u32 v{t}, v{t}, v{t+2}')
    a(f'v_readfirstlane_b32 s7, v{t}')
    a('s_add_u32 s13, s13, 1')
    a(f's_cmp_ge_u32 s7, {val}'); a(f's_cbranch_scc1 L_lwd_{name}')
    a('s_cmp_lt_u32 s13, 0x400000'); a(f's_cbranch_scc1 L_lw_{name}')
    a.label(f'L_lwd_{name}')
def lds_signal(a, val, t=20, extra=0):
    a('s_waitcnt lgkmcnt(0)')
    a('s_lshl_b32 s7, s6, 2'); a(f's_add_u32 s7, s7, {FL+extra}')
    a(f'v_mov_b32 v{t}, s7'); a(f'v_mov_b32 v{t+1}, {val}')
    a(f'ds_write_b32 v{t}, v{t+1}')

ACC=128; FR=64; GR=32
def acc(j,s): return vr(ACC+(j*4+s)*4,4)
def fload(a, t=16):
    a(f'v_and_b32 v{t}, 3, v2'); a(f'v_bfe_u32 v{t+1}, v2, 2, 2'); a(f'v_sub_u32 v{t}, v{t}, v{t+1}')
    a(f'v_lshlrev_b32 v{t}, 3, v{t}'); a(f'v_lshrrev_b32 v{t+1}, 4, v2'); a(f'v_lshlrev_b32 v{t+1}, 6, v{t+1}'); a(f'v_sub_u32 v{t}, v{t}, v{t+1}')
    a(f's_mul_i32 s7, s6, {KPITCH}'); a(f's_add_u32 s7, s7, {KARR+224}')
    a(f'v_add_u32 v{t}, s7, v{t}')
    for i in range(16):
        a(f'ds_read_b64_tr_b16 {vr(FR+4*i,2)}, v{t} offset:{256*i+32}')
        a(f'ds_read_b64_tr_b16 {vr(FR+4*i+2,2)}, v{t} offset:{256*i}')

def zero_upads(a, base, t=16):
    for i in range(4): a(f'v_mov_b32 v{t+i}, 0')
    a(f'v_bfe_u32 v{t+4}, v2, 3, 2'); a(f'v_mul_u32_u24 v{t+4}, {UPH}, v{t+4}')
    a(f'v_and_b32 v{t+5}, 7, v2'); a(f'v_lshl_add_u32 v{t+4}, v{t+5}, 4, v{t+4}')
    a(f's_mul_i32 s7, s63, {UCC}'); a(f's_add_u32 s7, s7, {base}')
    a(f'v_add_u32 v{t+4}, s7, v{t+4}')
    a(f'ds_write_b128 v{t+4}, {vr(t,4)}')

XR=12; KR=16; PP=20; QQ=24; CA=(27,28,29); CB=(30,31,11)
def gather_addr(a):
    a('v_lshrrev_b32 v3, 2, v2'); a('v_lshlrev_b32 v3, 4, v3'); a('v_and_b32 v4, 3, v2'); a('v_add_u32 v3, v3, v4')
    a('s_lshl_b32 s7, s63, 8'); a('v_add_u32 v3, s7, v3')
    a('v_lshlrev_b32 v3, 11, v3'); a('s_lshl_b32 s7, s60, 1'); a('v_add_u32 v3, s7, v3')
def gather_issue(a, regs, half):
    base = sp(P_X) if half==0 else 's[68:69]'
    for r in range(4):
        if r==0: a(f'global_load_dwordx2 {vr(regs[0],2)}, v3, {base}')
        else:
            a(f'v_add_u32 v4, {8192*r}, v3')
            a(f'global_load_dwordx2 {vr(regs[r],2)}, v4, {base}')
def gather_write(a, regs, half, tmp, vaddr):
    L=[]
    for ch in range(4):
        d=ch>>1; sel='s58' if (ch&1)==0 else 's59'
        t=tmp+2*(ch&1)
        L.append(f'v_perm_b32 v{t}, v{regs[1]+d}, v{regs[0]+d}, {sel}')
        L.append(f'v_perm_b32 v{t+1}, v{regs[3]+d}, v{regs[2]+d}, {sel}')
        L.append(f'ds_write_b64 v{vaddr}, {vr(t,2)} offset:{ch*UCC+512*half}')
    return L

def expand_own(a, hook=lambda i: None):
    a(f's_mul_i32 s7, s63, {KDP}'); a(f's_add_u32 s7, s7, {KD}')
    a('v_lshlrev_b32 v20, 5, v2'); a('v_lshlrev_b32 v21, 4, v2'); a('v_add_u32 v21, 512, v21')
    a('v_cmp_gt_u32 vcc, 32, v2'); a('v_cndmask_b32 v20, v21, v20, vcc'); a('v_add_u32 v20, s7, v20')
    a('v_lshlrev_b32 v21, 3, v2'); a('v_add_u32 v21, s7, v21')
    a('v_lshlrev_b32 v22, 2, v2'); a('v_add_u32 v22, s7, v22')
    for h,o in ((0,0),(1,KDH)):
        a(f'ds_read_b128 {vr(32+16*h,4)}, v20 offset:{o}'); a(f'ds_read_b128 {vr(36+16*h,4)}, v20 offset:{o+16}')
        a(f'ds_read_b64 {vr(40+16*h,2)}, v21 offset:{o+384*4}'); a(f'ds_read_b32 v{42+16*h}, v21 offset:{o+384*4+8}')
        a(f'ds_read2_b32 {vr(44+16*h,2)}, v22 offset0:0 offset1:1' if False else f'ds_read_b32 v{44+16*h}, v22 offset:{o+512*4}')
        a(f'ds_read_b32 v{45+16*h}, v22 offset:{o+513*4}')
        a(f'ds_read_b32 v{46+16*h}, v22 offset:{o+576*4}'); a(f'ds_read_b32 v{47+16*h}, v22 offset:{o+577*4}')
    hook(5)
    a('v_lshlrev_b32 v23, 4, v2'); a(f's_mul_i32 s8, s63, {KPITCH}'); a(f's_add_u32 s8, s8, {KARR+32}'); a('v_add_u32 v23, s8, v23')
    a('v_and_b32 v24, 1, v2'); a('v_cmp_eq_u32 s[14:15], 1, v24')
    for r in list(range(32,43))+list(range(44,48)): a(f'v_add_f32 v{r}, v{r}, v{r+16}')
    V=lambda i: 32+i
    pat=[0,0,1,2,2,2,3,4]
    for e in range(8):
        if pat[e]==e: a(f'v_mov_b32 v{48+e}, v{V(e)}')
        else: a(f'v_cndmask_b32 v{48+e}, v{V(pat[e])}, v{V(e)}, vcc')
    for e in range(4): a(f'v_cvt_pk_bf16_f32 v{56+e}, v{48+2*e}, v{49+2*e}')
    a(f'ds_write_b128 v23, v[56:59]')
    hook(6)
    a('v_cvt_pk_bf16_f32 v56, v40, v40'); a('v_cvt_pk_bf16_f32 v57, v40, v41'); a('v_cvt_pk_bf16_f32 v58, v41, v41'); a('v_cvt_pk_bf16_f32 v59, v42, v42')
    a('s_nop 0')
    a(f'ds_write_b128 v23, v[56:59] offset:1024')
    for k,(A,B) in enumerate(((44,45),(46,47))):
        o=60 if k==0 else 48
        a(f'v_cndmask_b32 v52, v{A}, v{B}, s[14:15]')
        a(f'v_cvt_pk_bf16_f32 v{o}, v{A}, v{A}'); a(f'v_cvt_pk_bf16_f32 v{o+1}, v{A}, v{A}')
        a(f'v_cvt_pk_bf16_f32 v{o+2}, v52, v{B}'); a(f'v_cvt_pk_bf16_f32 v{o+3}, v{B}, v{B}')
        a(f'ds_write_b128 v23, {vr(o,4)} offset:{2048+1024*k}')

def conv_addr_common(a, ubase_own, exbase):
    a('v_and_b32 v20, 15, v2'); a('v_lshrrev_b32 v21, 4, v2')
    a(f's_mul_i32 s7, s63, {UCC}'); a(f's_add_u32 s8, s7, {ubase_own+8}')
    a('v_lshlrev_b32 v3, 3, v20'); a('v_lshl_add_u32 v3, v21, 4, v3'); a('v_add_u32 v3, s8, v3')
    a(f's_add_u32 s8, s7, {UX+128}')
    a('v_lshlrev_b32 v4, 3, v20'); a('v_lshl_add_u32 v4, v21, 1, v4'); a('v_add_u32 v4, s8, v4')
    a('s_lshl_b32 s8, s63, 1'); a(f's_add_u32 s8, s8, {exbase}')
    a('v_mul_u32_u24 v5, 576, v21'); a('v_lshl_add_u32 v5, v20, 3, v5'); a('v_add_u32 v5, s8, v5')
    a('v_subrev_u32 v7, 16, v2'); a('v_add_u32 v23, 47, v2')
    a('v_cmp_gt_u32 vcc, 16, v2'); a('v_cndmask_b32 v7, v7, v23, vcc')
    a('v_cmp_eq_u32 s[70:71], 0, v2'); a('v_mov_b32 v23, 63'); a('v_cndmask_b32 v7, v7, v23, s[70:71]')
    a('v_lshlrev_b32 v7, 2, v7')
    for r in list(range(XR,XR+8))+list(CA)+list(CB): a(f'v_mov_b32 v{r}, 0')

def gread(q, buf):
    L=[]
    for s in range(4):
        L.append(f'ds_read_b64 {vr(GR+16*buf+4*s,2)}, v3 offset:{s*UPH+64*(q+1)}')
        L.append(f'ds_read_b64 {vr(GR+16*buf+4*s+2,2)}, v3 offset:{s*UPH+64*(q+1)+8}')
    return L
def mfmas(q):
    buf=(q+1)&1; j0=max(0,(q+1)//2); L=[]
    for s in range(4):
        for j in range(j0,8):
            c='0' if q==-1 else acc(j,s)
            L.append(f'v_mfma_f32_16x16x32_bf16 {acc(j,s)}, {vr(FR+4*(2*j-q),4)}, {vr(GR+16*buf+4*s,4)}, {c}')
    return L
def stage1(j, typ):
    D=lambda s,r: f'v{ACC+(j*4+s)*4+r}'
    cin = CA if j%2==0 else CB; cout= CB if j%2==0 else CA
    E=[]; L=[]
    if typ!=2:
        for r in range(4): E.append(f'ds_read_u16_d16_hi v{XR+r}, v4 offset:{r*UPH+128*j}')
    if typ==1:
        for r in range(4): E.append(f'ds_read_u16_d16_hi v{KR+r}, v6 offset:{r*UPH+128*j}')
    E += [f'v_add_f32 v{QQ}, {D(1,3)}, {D(2,2)}', f'v_add_f32 v{QQ+1}, {D(2,3)}, {D(3,2)}', f'v_add_f32 v{QQ}, v{QQ}, {D(3,1)}',
          f'ds_bpermute_b32 v{cout[1]}, v7, v{QQ+1}', f'ds_bpermute_b32 v{cout[2]}, v7, {D(3,3)}', f'ds_bpermute_b32 v{cout[0]}, v7, v{QQ}',
          f'v_add_f32 v{PP+1}, {D(0,1)}, {D(1,0)}', f'v_add_f32 v{PP+2}, {D(0,2)}, {D(1,1)}', f'v_add_f32 v{PP+3}, {D(0,3)}, {D(1,2)}',
          f'v_add_f32 v{PP+2}, v{PP+2}, {D(2,0)}', f'v_add_f32 v{PP+3}, v{PP+3}, {D(2,1)}', f'v_add_f32 v{PP+3}, v{PP+3}, {D(3,0)}']
    for r in range(3): L.append(f'v_cndmask_b32 v{QQ+r}, v{cout[r]}, v{cin[r]}, s[70:71]')
    L += [f'v_add_f32 v{PP}, {D(0,0)}, v{QQ}', f'v_add_f32 v{PP+1}, v{PP+1}, v{QQ+1}', f'v_add_f32 v{PP+2}, v{PP+2}, v{QQ+2}']
    L += [f'v_cvt_pk_bf16_f32 v{QQ}, v{PP}, v{PP+1}', f'v_cvt_pk_bf16_f32 v{QQ+1}, v{PP+2}, v{PP+3}']
    if typ==0:
        L += [f'v_lshlrev_b32 v{PP}, 16, v{QQ}', f'v_and_b32 v{PP+1}, 0xffff0000, v{QQ}',
              f'v_lshlrev_b32 v{PP+2}, 16, v{QQ+1}', f'v_and_b32 v{PP+3}, 0xffff0000, v{QQ+1}']
        for r in range(4): L.append(f'v_fmac_f32 v{PP+r}, v{XR+r}, v10')
        L += [f'v_cvt_pk_bf16_f32 v{QQ}, v{PP}, v{PP+1}', f'v_cvt_pk_bf16_f32 v{QQ+1}, v{PP+2}, v{PP+3}']
    o=j*2304
    L += [f'ds_write_b16 v5, v{QQ} offset:{o}', f'ds_write_b16_d16_hi v5, v{QQ} offset:{o+144}',
          f'ds_write_b16 v5, v{QQ+1} offset:{o+288}', f'ds_write_b16_d16_hi v5, v{QQ+1} offset:{o+432}']
    return E,L
def emit(a, mf, early, late):
    n=len(mf); slots=[[] for _ in range(n)]; k=0
    for ins in early:
        slots[min(n-1,k//2)].append(ins); k+=1
    start=min(n-1,max((len(early)+1)//2+3, n-(len(late)+1)//2)); k=0
    for ins in late:
        slots[min(n-1,start+k//2)].append(ins); k+=1
    for i in range(n):
        a(mf[i])
        for ins in slots[i]: a(ins)

H1=(128,130,132,134); H2=(136,138,140,142)
XT,XO=128,144
def tile_addr(a):
    a('v_lshrrev_b32 v5, 3, v2'); a('v_and_b32 v6, 7, v2')
    a('v_lshlrev_b32 v3, 11, v5'); a('v_lshl_add_u32 v3, v6, 4, v3')
    a('s_lshl_b32 s7, s5, 2'); a('s_add_u32 s7, s7, s63'); a('s_lshl_b32 s7, s7, 16')
    a('s_lshl_b32 s8, s4, 7'); a('s_add_u32 s7, s7, s8')
    a('v_add_u32 v3, s7, v3')
def store_addr(a, v, wsoff, sb):
    a(f'v_and_b32 v{v}, 15, v2'); a(f'v_lshlrev_b32 v{v}, 12, v{v}'); a('v_lshrrev_b32 v20, 4, v2'); a(f'v_lshl_add_u32 v{v}, v20, 4, v{v}')
    a('s_lshl_b32 s50, s63, 6'); a(f'v_add_u32 v{v}, s50, v{v}')
    a('s_lshl_b32 s50, s4, 18'); a('s_lshl_b32 s51, s5, 8'); a('s_add_u32 s50, s50, s51'); a(f's_add_u32 s50, s50, {wsoff}')
    a(f's_add_u32 s{sb}, s{P_WS}, s50'); a(f's_addc_u32 s{sb+1}, s{P_WS+1}, 0')
def flag_store(a, arr, t):
    a('s_lshl_b32 s7, s4, 1');
    if arr: a('s_add_u32 s7, s7, 1')
    a('s_lshl_b32 s7, s7, 4'); a('s_add_u32 s7, s7, s5'); a('s_lshl_b32 s7, s7, 2'); a('s_add_u32 s7, s7, s63'); a('s_lshl_b32 s7, s7, 4')
    a(f'v_mov_b32 v{t}, s7'); a(f'v_mov_b32 v{t+1}, s{S_TAG}')
    a('s_mov_b64 exec, 1')
    a(f'global_store_dword v{t}, v{t+1}, {sp(P_WS)} sc1')
    a('s_mov_b64 exec, -1')
def poll(a, arr, name, va, vd):
    a('s_cmp_eq_u32 s63, 0'); a(f's_cbranch_scc0 L_pw{name}')
    a('s_lshl_b32 s7, s4, 1')
    if arr: a('s_add_u32 s7, s7, 1')
    a('s_lshl_b32 s7, s7, 10'); a(f'v_lshlrev_b32 v{va}, 4, v2'); a(f'v_add_u32 v{va}, s7, v{va}')
    a('s_mov_b32 s13, 0')
    a.label(f'L_poll{name}')
    a(f'global_load_dword v{vd}, v{va}, {sp(P_WS)} sc1')
    a('s_waitcnt vmcnt(0)')
    a(f'v_cmp_ne_u32 vcc, s{S_TAG}, v{vd}')
    a(f's_cbranch_vccz L_polled{name}')
    a('s_add_u32 s13, s13, 1'); a('s_cmp_lt_u32 s13, 0x40000'); a(f's_cbranch_scc0 L_polled{name}')
    a('s_sleep 2'); a(f's_branch L_poll{name}')
    a.label(f'L_polled{name}')
    a(f'v_mov_b32 v{va}, {FL+48+16*arr}'); a(f'v_mov_b32 v20, 1'); a('v_mov_b32 v21, 1'); a('v_mov_b32 v22, 1'); a('v_mov_b32 v23, 1')
    a(f'ds_write_b128 v{va}, v[20:23]')
    a(f's_branch L_pd{name}')
    a.label(f'L_pw{name}')
    lds_wait(a, 'p'+name, 48+16*arr, 1, t=20)
    a.label(f'L_pd{name}')
    a('s_waitcnt lgkmcnt(0)'); a.lgkm_sync()
def uload(a, wsoff, regs, ldsbase, vt, vl):
    a('s_lshl_b32 s7, s4, 18'); a('s_lshl_b32 s8, s5, 14'); a('s_add_u32 s7, s7, s8'); a('s_lshl_b32 s8, s63, 12'); a('s_add_u32 s7, s7, s8')
    a(f's_add_u32 s7, s7, {wsoff}'); a(f's_add_u32 s68, s{P_WS}, s7'); a(f's_addc_u32 s69, s{P_WS+1}, 0')
    a(f'v_lshlrev_b32 v{vt}, 4, v2')
    for h in range(4): a(f'global_load_dwordx4 {vr(regs+4*h,4)}, v{vt}, s[68:69] offset:{1024*h} {OPT.get("uld","none").replace("none","")}'.rstrip())
    a(f's_mul_i32 s7, s63, {UCC}'); a(f's_add_u32 s7, s7, {ldsbase+128}')
    a(f'v_and_b32 v{vl}, 3, v2'); a(f'v_mul_u32_u24 v{vl}, {UPH}, v{vl}'); a(f'v_lshrrev_b32 v{vt}, 4, v2'); a(f'v_lshl_add_u32 v{vl}, v{vt}, 6, v{vl}')
    a(f'v_bfe_u32 v{vt}, v2, 2, 2'); a(f'v_lshl_add_u32 v{vl}, v{vt}, 4, v{vl}'); a(f'v_add_u32 v{vl}, s7, v{vl}')

def ahook(a, i):
    HA=int(OPT.get('ha',2)); HB=int(OPT.get('hb',3))
    if i==HA:
        a('s_waitcnt lgkmcnt(0)')
        a('s_cmp_lg_u32 s64, 0'); a(f's_cbranch_scc1 L_ah{i}')
        a('s_waitcnt vmcnt(1)')
        for h in range(4): a(f'ds_write_b128 v6, {vr(XT+4*h,4)} offset:{1152*h}')
        for cg in range(4):
            for h in range(2): a(f'ds_read_b64_tr_b16 {vr(XO+4*cg+2*h,2)}, v7 offset:{2304*h+32*cg}')
        for cg in range(4):
            if cg: a(f'v_add_u32 v4, {65536*cg}, v8')
            a(f'global_store_dwordx4 {"v4" if cg else "v8"}, {vr(XO+4*cg,4)}, s[54:55] sc1')
        a('s_waitcnt lgkmcnt(0)')
        a.label(f'L_ah{i}')
    if i==HB:
        a('s_cmp_eq_u32 s64, 0'); a(f's_cbranch_scc1 L_bh{i}')
        for h in range(4):
            if h: a(f'v_add_u32 v4, {0x4000*h}, v3')
            a(f'global_load_dwordx4 {vr(VT+4*h,4)}, {"v4" if h else "v3"}, {sp(P_V)} nt')
        for cg in range(4): a(f'global_load_dwordx2 {vr(SHW8+2*cg,2)}, v9, {sp(P_SHK)} offset:{128*cg}')
        a(f'global_load_dword v107, v11, {sp(P_WS)} sc1')
        a.label(f'L_bh{i}')

KT,VT = 128,144
HL,SHW8=224,228
AGX,AGW,AG=224,240,172
def gate(a):
    GX=AGX; GW=AGW; A=AG
    a(f'v_mov_b32 v{A}, 0'); a(f'v_mov_b32 v{A+1}, 0'); a(f'v_mov_b32 v{A+2}, 0x3f803f80')
    for i in range(8):
        a(f'v_lshlrev_b32 v{A+4}, 16, v{GW+i}'); a(f'v_and_b32 v{A+5}, 0xffff0000, v{GW+i}')
        for rr in range(2):
            t=A+6+2*rr
            a(f'v_lshlrev_b32 v{t}, 16, v{GX+8*rr+i}'); a(f'v_and_b32 v{t+1}, 0xffff0000, v{GX+8*rr+i}')
            a(f'v_mul_f32 v{t}, v{t}, v{A+4}'); a(f'v_mul_f32 v{t+1}, v{t+1}, v{A+5}')
            a(f'v_cvt_pk_bf16_f32 v{t}, v{t}, v{t+1}')
            a(f'v_dot2c_f32_bf16 v{A+rr}, v{t}, v{A+2}')
    for m in ('quad_perm:[1,0,3,2]','quad_perm:[2,3,0,1]','row_half_mirror','row_mirror'):
        for rr in range(2): a(f'v_add_f32_dpp v{A+rr}, v{A+rr}, v{A+rr} {m} row_mask:0xf bank_mask:0xf')
    for rr in range(2):
        for i,l in enumerate((0,16,32,48)): a(f'v_readlane_b32 s{50+4*rr+i}, v{A+rr}, {l}')
    for rr in range(2):
        a(f'v_mov_b32 v{A+4+rr}, s{50+4*rr}')
        for i in range(1,4): a(f'v_add_f32 v{A+4+rr}, s{50+4*rr+i}, v{A+4+rr}')
    a('v_cmp_eq_u32 vcc, 1, v2'); a(f'v_cndmask_b32 v{A+4}, v{A+4}, v{A+5}, vcc')
    t=A+4
    a(f'v_cvt_pk_bf16_f32 v{t}, v{t}, v{t}'); a(f'v_and_b32 v{t}, 0xffff0000, v{t}')
    a(f'v_mul_f32 v{t}, 0xbfb8aa3b, v{t}'); a(f'v_exp_f32 v{t}, v{t}'); a(f'v_add_f32 v{t}, 1.0, v{t}'); a(f'v_rcp_f32 v{t}, v{t}')
    a(f'v_cvt_pk_bf16_f32 v{t}, v{t}, v{t}'); a(f'v_and_b32 v{t}, 0xffff0000, v{t}')
    a(f'v_mov_b32 v{t+1}, s{S_TAG}')
    a('s_lshl_b32 s56, s9, 3'); a(f's_add_u32 s56, s56, {WS_G}'); a(f'v_lshlrev_b32 v{A+8}, 3, v2'); a(f'v_add_u32 v{A+8}, s56, v{A+8}')
    a('s_mov_b64 exec, 3')
    a(f'global_store_dwordx2 v{A+8}, {vr(t,2)}, {sp(P_WS)} sc1')
    a('s_mov_b64 exec, -1')

def A_issue(a):
    a.auto_lgkm=False
    a(f'v_mov_b32 v11, {WS_EPOCH}')
    a(f'global_load_ushort v105, v13, {sp(P_DSKIP)}')
    for h in range(4):
        if h: a(f'v_add_u32 v4, {0x4000*h}, v3')
        a(f'global_load_dwordx4 {vr(XT+4*h,4)}, {"v4" if h else "v3"}, {sp(P_X)} nt')
    a(f'global_load_dword v107, v11, {sp(P_WS)} sc1')
    a.stamp('issued')
    a('s_lshr_b32 s7, s2, 3'); a('s_lshl_b32 s8, s6, 3'); a('s_add_u32 s7, s7, s8')
    a('s_cmp_ge_u32 s7, 48'); a('s_cselect_b32 s8, 48, 0'); a('s_sub_u32 s7, s7, s8')
    a('s_cmp_ge_u32 s7, 24'); a('s_cselect_b32 s8, 24, 0'); a('s_sub_u32 s7, s7, s8')
    a('s_lshl_b32 s7, s7, 10'); a('v_lshlrev_b32 v1, 4, v2'); a('v_add_u32 v1, s7, v1')
    a('v_cmp_gt_u32 vcc, L_codeend-L_pc-16, v1'); a('s_and_saveexec_b64 s[14:15], vcc'); a('s_cbranch_execz L_nopf1')
    a('global_load_dwordx4 v[248:251], v1, s[76:77]')
    a.label('L_nopf1'); a('s_mov_b64 exec, s[14:15]')
    a.label('L_nopf')
    for i in range(4): a(f'v_mov_b32 v{16+i}, 0')
    a(f's_mul_i32 s7, s63, {KPITCH}'); a('v_and_b32 v20, 1, v2'); a('v_lshlrev_b32 v20, 4, v20'); a('v_add_u32 v20, s7, v20')
    a(f'ds_write_b128 v20, v[16:19] offset:{KARR}')
    store_addr(a, 8, WS_UX, 54)
    a(f's_mul_i32 s7, s63, {UCC}'); a(f's_add_u32 s7, s7, {UX}')
    a('v_mul_u32_u24 v7, 144, v5'); a('v_lshl_add_u32 v6, v6, 4, v7'); a('v_add_u32 v6, s7, v6')
    a('v_bfe_u32 v7, v2, 2, 2'); a('v_lshrrev_b32 v20, 4, v2'); a('v_lshl_add_u32 v7, v7, 2, v20'); a('v_mul_u32_u24 v7, 144, v7')
    a('v_and_b32 v20, 3, v2'); a('v_lshl_add_u32 v7, v20, 3, v7'); a('v_add_u32 v7, s7, v7')
    a(f's_waitcnt vmcnt(6)')

def A_rest(a):
    a('s_waitcnt vmcnt(0) lgkmcnt(0)')
    a.lgkm_sync()
    a.stamp('kgen')
    a('v_readfirstlane_b32 s75, v107')
    a(f's_mul_i32 s{S_TAG}, s75, 0x9e3779b1'); a(f's_add_u32 s{S_TAG}, s{S_TAG}, 0x7f4a7c15')
    flag_store(a, 0, 4)
    a('s_lshl_b32 s9, s2, 3'); a('s_lshl_b32 s8, s63, 1'); a('s_add_u32 s9, s9, s8')
    a('v_lshlrev_b32 v9, 4, v2'); a('s_lshl_b32 s8, s9, 11'); a('v_add_u32 v8, s8, v9'); a('v_add_u32 v4, 0x800, v8')
    a(f'global_load_dwordx4 {vr(AGX,4)}, v8, {sp(P_X)} nt'); a(f'global_load_dwordx4 {vr(AGX+4,4)}, v8, {sp(P_X)} offset:1024 nt')
    a(f'global_load_dwordx4 {vr(AGX+8,4)}, v4, {sp(P_X)} nt'); a(f'global_load_dwordx4 {vr(AGX+12,4)}, v4, {sp(P_X)} offset:1024 nt')
    a(f'global_load_dwordx4 {vr(AGW,4)}, v9, {sp(P_GW)}'); a(f'global_load_dwordx4 {vr(AGW+4,4)}, v9, {sp(P_GW)} offset:1024')
    a('v_lshlrev_b32 v10, 16, v105')
    lds_wait(a,'kd',32,1,t=20)
    a.lgkm_sync()
    a.stamp('bar1')
    expand_own(a)
    zero_upads(a, UX, t=16)
    fload(a, t=24)
    a.stamp('expand')
    poll(a, 0, 'x', 3, 4)
    a.stamp('xpolled')
    uload(a, WS_UX, 128, UX, 3, 6)
    a('s_waitcnt vmcnt(4)')
    gate(a)
    a.stamp('gate')
    conv_addr_common(a, UX, EXA)
    a('s_waitcnt vmcnt(1)')
    a.stamp('gath1')
    for h in range(4): a(f'ds_write_b128 v6, {vr(128+4*h,4)} offset:{h*256}')
    lds_signal(a, 1, t=20)
    lds_wait(a,'a1b',16,1,t=20)
    a.stamp('xready')
    a.lgkm_sync()
    for ins in gread(-1,0): a(ins)
    for q in range(-1,15):
        early=[]; late=[]
        if q+1<=14: early += gread(q+1,(q+2)&1)
        if q>=1 and q%2==1:
            E,L=stage1((q-1)//2,0); early+=E; late+=L
        emit(a, mfmas(q), early, late)
        if q in (0,6,14): a.stamp('aq%d'%q)
    E,L=stage1(7,0)
    for ins in E+L: a(ins)
    a('s_lshl_b32 s7, s63, 6'); a('v_add_u32 v22, s7, v2')
    a(f'v_lshlrev_b32 v16, 3, v22'); a(f'v_add_u32 v16, {WS_G}, v16')
    for i in range(1,4): a(f'v_add_u32 v{16+i}, {4096*i}, v16')
    a('s_lshl_b32 s7, s60, 1'); a('v_mov_b32 v6, s7')
    a(f'global_load_dwordx2 v[4:5], v6, {sp(P_SSMD)}')
    for j in range(8): a(f'global_load_dwordx2 {vr(128+2*j,2)}, v{16+(j>>1)}, {sp(P_WS)} offset:{2048*(j&1)} sc1')
    a('v_and_b32 v20, 15, v22')
    a('v_mul_u32_u24 v9, 144, v20'); a('v_lshrrev_b32 v23, 4, v22'); a('v_lshl_add_u32 v9, v23, 3, v9')
    a(f'v_add_u32 v7, {EXA}, v9'); a(f'v_add_u32 v9, {EXB}, v9')
    a('s_lshl_b32 s7, s60, 1'); a('v_lshlrev_b32 v8, 11, v22'); a('v_add_u32 v8, s7, v8')
    a('v_and_b32 v20, 3, v22'); a(f'v_mul_u32_u24 v3, {UPH}, v20'); a('v_lshrrev_b32 v20, 2, v22'); a('v_lshl_add_u32 v3, v20, 1, v3')
    a(f'v_add_u32 v6, {UK+128}, v3'); a(f'v_add_u32 v3, {UX+128}, v3')
    XP,KP,AP=64,96,144
    lds_signal(a, 2, t=20)
    for i in range(64): a(f'v_mov_b32 v{XP+i}, 0')
    a(f's_mov_b32 s72, s{P_OUT}'); a(f's_mov_b32 s73, s{P_OUT+1}')
    OSC=OPT.get('osc','')
    lds_wait(a,'a2',0,2,t=20); a.lgkm_sync()
    for j in range(8):
        for ch in range(4): a(f'ds_read_u16_d16_hi v{XP+4*j+ch}, v3 offset:{ch*UCC+128*j}')
        a(f'ds_read_b64 {vr(AP+2*j,2)}, v7 offset:{j*2304}')
    a('s_waitcnt vmcnt(0)')
    a('v_lshlrev_b32 v60, 16, v4'); a('v_and_b32 v61, 0xffff0000, v4'); a('v_lshlrev_b32 v62, 16, v5'); a('v_and_b32 v63, 0xffff0000, v5')
    a.stamp('gok')
    lds_wait(a,'kvl',16,2,t=20); a.lgkm_sync()
    for j in range(8):
        for ch in range(4): a(f'ds_read_u16_d16_hi v{KP+4*j+ch}, v6 offset:{ch*UCC+128*j}')
    for j in range(8):
        a('s_mov_b32 s13, 0')
        a.label(f'L_gc{j}')
        a(f'v_cmp_ne_u32 vcc, s{S_TAG}, v{129+2*j}'); a(f's_cbranch_vccz L_gok{j}')
        a('s_add_u32 s13, s13, 1'); a('s_cmp_lt_u32 s13, 0x10000'); a(f's_cbranch_scc0 L_gok{j}')
        a('s_sleep 8')
        a(f'global_load_dwordx2 {vr(128+2*j,2)}, v{16+(j>>1)}, {sp(P_WS)} offset:{2048*(j&1)} sc1'); a('s_waitcnt vmcnt(0)')
        a(f's_branch L_gc{j}')
        a.label(f'L_gok{j}')
        for h in range(2):
            a(f'v_lshlrev_b32 v{40+2*h}, 16, v{AP+2*j+h}'); a(f'v_and_b32 v{41+2*h}, 0xffff0000, v{AP+2*j+h}')
        lds_wait(a,f't{j}',16,j+3,t=20); a.lgkm_sync()
        a(f'ds_read_b64 {vr(34,2)}, v9 offset:{j*2304}')
        for h in range(2):
            a(f'v_lshlrev_b32 v{44+2*h}, 16, v{34+h}'); a(f'v_and_b32 v{45+2*h}, 0xffff0000, v{34+h}')
        for i in range(4): a(f'v_fmac_f32 v{44+i}, v{KP+4*j+i}, v{60+i}')
        for i in range(4): a(f'v_mul_f32 v{44+i}, v{44+i}, v{XP+4*j+i}')
        a('v_cvt_pk_bf16_f32 v36, v44, v45'); a('v_cvt_pk_bf16_f32 v37, v46, v47')
        for h in range(2):
            a(f'v_lshlrev_b32 v{44+2*h}, 16, v{36+h}'); a(f'v_and_b32 v{45+2*h}, 0xffff0000, v{36+h}')
        for i in range(4): a(f'v_sub_f32 v{40+i}, v{40+i}, v{44+i}')
        for i in range(4): a(f'v_fmac_f32 v{44+i}, v{40+i}, v{128+2*j}')
        o=48+2*(j&1)
        a(f'v_cvt_pk_bf16_f32 v{o}, v44, v45'); a(f'v_cvt_pk_bf16_f32 v{o+1}, v46, v47')
        a(f'global_store_dwordx2 v8, {vr(o,2)}, s[72:73] {OSC}'.rstrip())
        a('s_add_u32 s72, s72, 0x80000'); a('s_addc_u32 s73, s73, 0')
        if j in (0,3,6): a.stamp('st2_%d'%j)

KT,VT,H = 128,144,160
SHW=164; W10,W32,vTR,vTRK,vST = 166,167,168,169,170
KO,VO,KVO = 176,208,216
GX,GW,SK = 224,240,108
HL,SHW8=224,228
def B_issue(a):
    a.auto_lgkm=False
    a('s_lshl_b32 s12, s4, 9')
    a('v_and_b32 v11, 15, v2'); a('v_lshlrev_b32 v9, 3, v11'); a('v_add_u32 v9, s12, v9')
    a(f'v_mov_b32 v11, {WS_EPOCH}')
    for i in range(4): a(f'v_mov_b32 v{HL+i}, 0')
    a(f'global_load_ushort v105, v13, {sp(P_SSMD)}')
    for h in range(4):
        if h: a(f'v_add_u32 v4, {0x4000*h}, v3')
        r = 'v3' if h==0 else 'v4'
        a(f'global_load_dwordx4 {vr(KT+4*h,4)}, {r}, {sp(P_K)} nt')
    a('s_add_u32 s7, s5, s63'); a('s_cmp_eq_u32 s7, 0'); a('s_cbranch_scc1 L_nohalo')
    a('v_cmp_gt_u32 vcc, 24, v2'); a('s_and_saveexec_b64 s[14:15], vcc')
    a('v_add_u32 v1, 0xffffe800, v3')
    a(f'global_load_dwordx4 {vr(HL,4)}, v1, {sp(P_K)} nt')
    a('s_mov_b64 exec, s[14:15]')
    a.label('L_nohalo')
    a.stamp('issued')
def B_calc(a):
    a(f's_mul_i32 s13, s63, {STGW}'); a(f's_add_u32 s13, s13, {STG}')
    a('v_mul_u32_u24 v7, 144, v5'); a('v_lshl_add_u32 v7, v6, 4, v7')
    a('v_add_u32 v98, s13, v7')
    a('v_and_b32 v5, 3, v2'); a('v_bfe_u32 v6, v2, 2, 2'); a('v_lshrrev_b32 v20, 4, v2')
    a(f'v_lshl_add_u32 v{vTR}, v6, 2, v20'); a(f'v_mul_u32_u24 v{vTR}, 144, v{vTR}')
    a(f'v_lshl_add_u32 v{vTR}, v5, 3, v{vTR}'); a(f'v_add_u32 v{vTR}, s13, v{vTR}')
    a(f'v_add_u32 v{vTRK}, v6, v20'); a(f'v_mul_u32_u24 v{vTRK}, 144, v{vTRK}')
    a(f'v_lshl_add_u32 v{vTRK}, v5, 3, v{vTRK}'); a(f'v_add_u32 v{vTRK}, s13, v{vTRK}')
    store_addr(a, vST, WS_U, 54)
    for i in range(4): a(f'v_mov_b32 v{16+i}, 0')
    a(f's_mul_i32 s8, s6, {KPITCH}'); a('v_and_b32 v20, 1, v2'); a('v_lshlrev_b32 v20, 4, v20'); a('v_add_u32 v20, s8, v20')
    a(f'ds_write_b128 v20, v[16:19] offset:{KARR}')
    a('s_lshl_b32 s8, s61, 12'); a('v_lshlrev_b32 v10, 4, v2'); a('v_add_u32 v14, s8, v10')
    a('s_lshl_b32 s9, s2, 3'); a('s_lshl_b32 s8, s63, 1'); a('s_add_u32 s9, s9, s8')
    a('s_lshl_b32 s8, s9, 11'); a('v_add_u32 v8, s8, v10')
    a('s_waitcnt vmcnt(5)')
def B_rest(a):
    a('s_waitcnt lgkmcnt(0)')
    a.stamp('kgen')
    lds_signal(a,1,t=20,extra=16)
    a.lgkm_sync()
    a('s_waitcnt vmcnt(0)')
    a.stamp('tiles')
    for h in range(4):
        a(f'ds_write_b128 v98, {vr(KT+4*h,4)} offset:{KS+432+1152*h}')
        a(f'ds_write_b128 v98, {vr(VT+4*h,4)} offset:{VS+1152*h}')
    a('v_cmp_gt_u32 vcc, 24, v2'); a('s_and_saveexec_b64 s[56:57], vcc')
    a(f'ds_write_b128 v98, {vr(HL,4)} offset:{KS}')
    a('s_mov_b64 exec, s[56:57]')
    a('v_readfirstlane_b32 s75, v107')
    a(f's_mul_i32 s{S_TAG}, s75, 0x9e3779b1'); a(f's_add_u32 s{S_TAG}, s{S_TAG}, 0x7f4a7c15')
    for i in range(8): a(f'v_alignbit_b32 v{SHW8+i}, v{SHW8+i}, v{SHW8+i}, 16')
    KO4=16; VO4=80; KV4=96
    for cg in range(4):
        for e in range(8): a(f'ds_read_b64_tr_b16 {vr(KO4+16*cg+2*e,2)}, v{vTRK} offset:{KS+576*e+32*cg}')
        for h in range(2): a(f'ds_read_b64_tr_b16 {vr(VO4+4*cg+2*h,2)}, v{vTR} offset:{VS+2304*h+32*cg}')
    for cg in range(4):
        W10=SHW8+2*cg; W32=SHW8+2*cg+1
        for e in range(8):
            d=KO4+16*cg+2*e; a(f'v_dot2_f32_bf16 v{d}, v{d}, v{W32}, 0')
        for e in range(8):
            d=KO4+16*cg+2*e; a(f'v_dot2c_f32_bf16 v{d}, v{d+1}, v{W10}')
        for e2 in range(4):
            d=KO4+16*cg+4*e2; vv=VO4+4*cg+e2
            a(f'v_lshlrev_b32 v{d+1}, 16, v{vv}'); a(f'v_and_b32 v{d+3}, 0xffff0000, v{vv}')
        for e2 in range(4):
            d=KO4+16*cg+4*e2
            a(f'v_mul_f32 v{d}, v{d}, v{d+1}'); a(f'v_mul_f32 v{d+2}, v{d+2}, v{d+3}')
        for e2 in range(4):
            d=KO4+16*cg+4*e2
            a(f'v_cvt_pk_bf16_f32 v{KV4+4*cg+e2}, v{d}, v{d+2}')
        if cg: a(f'v_add_u32 v4, {65536*cg}, v{vST}')
        a(f'global_store_dwordx4 {"v4" if cg else "v%d"%vST}, {vr(KV4+4*cg,4)}, s[54:55] sc1')
    a.stamp('stored')
    lds_signal(a,1,t=20)
    a('s_waitcnt vmcnt(0)')
    flag_store(a, 1, 172)
    a.stamp('flag')
    for h in range(4): a(f'global_load_dwordx4 {vr(SK+4*h,4)}, v14, {sp(P_SSMK)} offset:{1024*h} nt')
    a('s_waitcnt vmcnt(0)')
    a(f's_mul_i32 s7, s6, {KPITCH}'); a('v_add_u32 v7, s7, v10')
    for h in range(4): a(f'ds_write_b128 v7, {vr(SK+4*h,4)} offset:{KARR+32+1024*h}')
    fload(a, t=16)
    a.stamp('fload')
    a.auto_lgkm=False
    poll(a, 1, 'k', 6, 5)
    a.stamp('polled')
    uload(a, WS_U, GR, UK, 7, 0)
    conv_addr_common(a, UK, EXB)
    lds_wait(a,'b1',0,1,t=20)
    zero_upads(a, UK)
    a('s_cmp_eq_u32 s6, 4'); a('s_cbranch_scc0 L_noarr')
    lds_wait(a,'arr',16,1,t=20)
    a('s_mov_b64 exec, 1'); a('v_mov_b32 v9, 0'); a('v_mov_b32 v1, 1')
    a(f'global_atomic_add v8, v9, v1, {sp(P_DBG)} sc0')
    a('s_mov_b64 exec, -1')
    a('s_waitcnt vmcnt(1)'); a('s_branch L_arrd')
    a.label('L_noarr')
    a('s_waitcnt vmcnt(0)')
    a.label('L_arrd')
    for h in range(4): a(f'ds_write_b128 v0, {vr(GR+4*h,4)} offset:{h*256}')
    a('s_lshl_b32 s7, s6, 2'); a(f's_add_u32 s7, s7, {FL}'); a('v_mov_b32 v6, s7')
    a('v_mov_b32 v4, 2'); a('ds_write_b32 v6, v4')
    a.stamp('uwrite')
    a.auto_lgkm=True; a.lgkm_sync()
    a('s_waitcnt lgkmcnt(0)')
    def tsig(j):
        a(f'v_mov_b32 v4, {j+3}'); a('ds_write_b32 v6, v4')
    for ins in gread(-1,0): a(ins)
    for q in range(-1,15):
        early=[]; late=[]; bar=False
        if q+1<=14: early += gread(q+1,(q+2)&1)
        if q>=1 and q%2==1:
            E,L=stage1((q-1)//2,2); early+=E; late+=L; bar=True
        emit(a, mfmas(q), early, late)
        if bar: tsig((q-1)//2)
        if q in (0,2,6,10,14): a.stamp('bq%d'%q)
    E,L=stage1(7,2)
    for ins in E+L: a(ins)
    tsig(7)
    a('s_waitcnt lgkmcnt(0)')
    a('s_cmp_eq_u32 s6, 4'); a('s_cbranch_scc0 L_nobump')
    a('s_waitcnt vmcnt(0)')
    a('v_readfirstlane_b32 s7, v8'); a('s_cmp_eq_u32 s7, 0xff'); a('s_cbranch_scc0 L_nobump')
    a('s_add_u32 s7, s75, 1'); a('s_mov_b64 exec, 1')
    a(f'v_mov_b32 v9, {WS_EPOCH}'); a('v_mov_b32 v1, s7')
    a(f'global_store_dword v9, v1, {sp(P_WS)} sc1')
    a('s_mov_b64 exec, -1')
    a.label('L_nobump')

def build(stamps=False):
    a=Asm(); a.stamps=stamps
    if OPT.get('sel'): a.stamp_sel=set(OPT['sel'].split(','))
    prologue(a)
    a.stamp('rt0',True); a.stamp('t0')
    for i in range(4): a(f'v_mov_b32 v{16+i}, 0')
    for r in (9,14,170,8,11): a(f'v_mov_b32 v{r}, 0')
    a('v_and_b32 v20, 7, v2'); a('v_lshlrev_b32 v20, 4, v20'); a(f'v_add_u32 v20, {FL}, v20')
    a('ds_write_b128 v20, v[16:19]')
    tile_addr(a)
    a('s_waitcnt lgkmcnt(0)')
    a.stamp('karg')
    param_loads(a)
    a('s_barrier')
    a('s_cmp_eq_u32 s64, 0'); a('s_cbranch_scc1 L_Aissue')
    B_issue(a)
    a('s_branch L_Bcalc')
    a.label('L_Aissue'); a.hist=[]
    A_issue(a)
    a('s_branch L_kgen')
    a.label('L_Bcalc'); a.hist=[]
    B_calc(a)
    a.label('L_kgen')
    a.stamp('params')
    a.auto_lgkm=True; a.lgkm_sync()
    a('s_waitcnt lgkmcnt(0)')
    kgen(a, lambda i: ahook(a,i))
    a('s_cmp_eq_u32 s64, 0'); a('s_cbranch_scc0 L_Brest')
    dq=list(a.dsq)
    A_rest(a)
    a('s_branch L_done')
    a.label('L_Brest')
    a.hist=[]; a.auto_lgkm=True; a.dsq=dq
    B_rest(a)
    a.label('L_done')
    a.auto_lgkm=False
    a.stamp('end'); a.stamp('rt1',True); a.dump_stamps(WS_TS)
    a.label('L_end')
    a('s_endpgm')
    a.label('L_codeend')
    return a

def gen(stamps=False):
    HEAD = open('cdna_kernels/%s.s.ref' % NAME).read().split('; Override launch')[0]
    a=build(stamps)
    if stamps: HEAD += '; STAMPS ' + ','.join(k for k,v in sorted(a.stamp_names.items(), key=lambda kv: kv[1])) + '\n'
    label=NAME+'_kernel'
    out=HEAD+f'; @launch grid=(256,1,1) block=(512,1,1) lds={LDS_TOTAL}\n'
    out+='.amdgcn_target "amdgcn-amd-amdhsa--gfx950"\n.text\n'
    out+=f'.globl {label}\n.p2align 8\n.type {label},@function\n{label}:\n'+a.text()
    out+=('.section .rodata,"a"\n.p2align 6\n'
          f'.amdhsa_kernel {label}\n  .amdhsa_next_free_vgpr 256\n  .amdhsa_next_free_sgpr 100\n  .amdhsa_accum_offset 256\n'
          '  .amdhsa_group_segment_fixed_size 0\n  .amdhsa_kernarg_size 136\n  .amdhsa_user_sgpr_count 2\n'
          '  .amdhsa_user_sgpr_kernarg_segment_ptr 1\n  .amdhsa_system_sgpr_workgroup_id_x 1\n  .amdhsa_float_denorm_mode_32 3\n.end_amdhsa_kernel\n')
    return out
if __name__=='__main__':
    for x in sys.argv[2:]:
        if '=' in x: k,v=x.split('=',1); OPT[k]=v
        else: OPT[x]=True
    open(sys.argv[1],'w').write(gen('stamps' in sys.argv))
```

```python
import sys, struct
from asmlib import Asm
NAME = 'gated_mix__ssm_conv_s4d__ssm_conv_h3__prompt'
LOG2E = '0x3fb8aa3b'
WS_FLAG = 0
WS_EPOCH= 0x10000
WS_G    = 0x20000
WS_TS   = 0x40000
WS_UX   = 0x100000
WS_U    = 0x500000
P_X, P_LOGA, P_AIM, P_CRE, P_CIM, P_LOGDT, P_DSKIP, P_Q = 16,18,20,22,24,26,28,30
P_K, P_V, P_SHK, P_SSMK, P_SSMD, P_GW, P_OUT, P_DBG, P_WS = 32,34,36,38,40,42,44,46,48
def sp(n): return f's[{n}:{n+1}]'
def vr(n,c=1): return f'v{n}' if c==1 else f'v[{n}:{n+c-1}]'
def flit(x): return '0x%08x' % struct.unpack('<I', struct.pack('<f', x))[0]
KARR=0; KPITCH=4128
KD=33024; KDP=3072; KDH=12288
TAB=57600; TABP=272; TABW=16*TABP
STG=TAB+8*TABW
KS=0; VS=5040; STGW=9648
UX=STG+4*STGW
UCC=4672; UPH=1168
UK=TAB
FL=UX+4*UCC
EXA=STG
EXB=KD
LDS_TOTAL=FL+128
S_TAG=74
OPT={}

def prologue(a):
    a('s_cmp_ge_u32 s2, 256')
    a('s_cbranch_scc1 L_end')
    a('s_load_dwordx16 s[16:31], s[0:1], 0')
    a('s_load_dwordx16 s[32:47], s[0:1], 64')
    a('s_load_dwordx2 s[48:49], s[0:1], 128')
    a('s_getpc_b64 s[76:77]')
    a.label('L_pc')
    a('v_lshrrev_b32 v1, 6, v0')
    a('v_and_b32 v2, 63, v0')
    a('s_and_b32 s3, s2, 7')
    a('v_readfirstlane_b32 s6, v1')
    a('s_lshl_b32 s4, s3, 1')
    a('s_bfe_u32 s3, s2, 0x10003')
    a('s_or_b32 s4, s4, s3')
    a('s_lshr_b32 s5, s2, 4')
    a('s_lshl_b32 s60, s4, 6'); a('s_lshl_b32 s7, s5, 2'); a('s_add_u32 s60, s60, s7')
    a('s_and_b32 s63, s6, 3'); a('s_lshr_b32 s64, s6, 2')
    a('s_add_u32 s61, s63, s60')
    a('s_lshl_b32 s7, s61, 8'); a('s_lshl_b32 s8, s64, 7'); a('s_add_u32 s7, s7, s8')
    a('v_lshlrev_b32 v12, 1, v2'); a('v_add_u32 v12, s7, v12')
    a('s_lshl_b32 s8, s61, 1'); a('v_mov_b32 v13, s8')

def param_loads(a):
    a(f'global_load_ushort v100, v12, {sp(P_LOGA)}')
    a(f'global_load_ushort v104, v13, {sp(P_LOGDT)}')
    a(f'global_load_ushort v101, v12, {sp(P_AIM)}')
    a(f'global_load_ushort v102, v12, {sp(P_CRE)}')
    a(f'global_load_ushort v103, v12, {sp(P_CIM)}')

def cmul(a, d, x, y, t):
    a(f'v_pk_mul_f32 {vr(t,2)}, {vr(x,2)}, {vr(y,2)} op_sel:[1,1] op_sel_hi:[1,0]')
    a(f'v_pk_fma_f32 {vr(d,2)}, {vr(x,2)}, {vr(y,2)}, {vr(t,2)} op_sel:[0,0,0] op_sel_hi:[0,1,1] neg_lo:[0,0,1]')
Y=20; E1=22; E8=24; E128=26; T=28; T2=30; R0=32; TT=48; PW=50; BF=52; AF=68; KACC=84; vTW=16; vTRD=17; TU=96
def put(a,row, reg, neg=False, tmp=19):
    a(f'v_cvt_pk_bf16_f32 v{tmp}, v{reg}, {"-" if neg else ""}v{reg+1}')
    a(f'ds_write_b32 v{vTW}, v{tmp} offset:{row*TABP}')

def kgen(a, hook=lambda i: None):
    hook(0)
    for r in (100,104,101,102,103): a(f'v_lshlrev_b32 v{r}, 16, v{r}')
    a(f'v_mul_f32 v104, {LOG2E}, v104'); a(f'v_mul_f32 v100, {LOG2E}, v100')
    a('v_exp_f32 v104, v104'); a('v_exp_f32 v100, v100')
    a(f's_mul_i32 s7, s6, {TABW}'); a(f's_add_u32 s7, s7, {TAB}')
    a(f'v_lshlrev_b32 v{vTW}, 2, v2'); a(f'v_add_u32 v{vTW}, s7, v{vTW}')
    a(f'v_and_b32 v{vTRD}, 15, v2'); a(f'v_mul_u32_u24 v{vTRD}, {TABP}, v{vTRD}')
    a('v_lshrrev_b32 v18, 4, v2'); a(f'v_lshl_add_u32 v{vTRD}, v18, 4, v{vTRD}'); a(f'v_add_u32 v{vTRD}, s7, v{vTRD}')
    a('v_cvt_pk_bf16_f32 v106, v104, v100')
    a('v_lshlrev_b32 v104, 16, v106'); a('v_and_b32 v100, 0xffff0000, v106')
    a('v_mul_f32 v100, v100, v104'); a('v_mul_f32 v101, v101, v104')
    a('v_mul_f32 v100, 0xbfb8aa3b, v100'); a('v_mul_f32 v101, 0.15915494, v101')
    a('v_add_f32 v104, v104, v104')
    a(f'v_mul_f32 v{Y}, v102, v104'); a(f'v_mul_f32 v{Y+1}, v103, v104')
    a(f'v_mul_f32 v40, {flit(8.0)}, v100'); a(f'v_mul_f32 v41, {flit(8.0)}, v101')
    a(f'v_mul_f32 v42, {flit(128.0)}, v100'); a(f'v_mul_f32 v43, {flit(128.0)}, v101')
    a('v_exp_f32 v44, v100'); a('v_fract_f32 v45, v101')
    a('v_exp_f32 v40, v40'); a('v_fract_f32 v41, v41')
    a('v_exp_f32 v42, v42'); a('v_fract_f32 v43, v43')
    for (E,m,p) in ((E8,40,41),(E1,44,45),(E128,42,43)):
        a(f'v_cos_f32 v{E}, v{p}'); a(f'v_sin_f32 v{E+1}, v{p}')
    for (E,m,p) in ((E8,40,41),(E1,44,45),(E128,42,43)):
        a(f'v_mul_f32 v{E}, v{E}, v{m}'); a(f'v_mul_f32 v{E+1}, v{E+1}, v{m}')
    a(f'v_mov_b32 v{R0}, 1.0'); a(f'v_mov_b32 v{R0+1}, 0')
    a(f'v_mov_b32 v{R0+2}, v{E1}'); a(f'v_mov_b32 v{R0+3}, v{E1+1}')
    put(a,0,Y,True)
    for j in range(1,16):
        cmul(a, Y, Y, E8, T)
        if 2<=j+1<=7: cmul(a, R0+2*(j+1), R0+2*j, E1, T2)
        if j==7: cmul(a, PW, E128, E128, T2)
        put(a,j,Y,True)
        if j==4: hook(1)
        if j==12: hook(2)
    for ks in range(4): a(f'ds_read_b128 {vr(BF+4*ks,4)}, v{vTRD} offset:{64*ks}')
    for r in range(8): put(a,r, R0+2*r, tmp=18+(r&1))
    put(a,8,E128)
    for r in range(1,8):
        cmul(a, TT if r&1 else TU, E128, R0+2*r, T if r&1 else T2); put(a,8+r, TT if r&1 else TU, tmp=18+(r&1))
    for ks in range(4): a(f'ds_read_b128 {vr(AF+4*ks,4)}, v{vTRD} offset:{64*ks}')
    hook(3)
    for aa in (2,3):
        base=4*(aa-2)
        put(a,base,PW)
        for r in range(1,4):
            cmul(a, TT if r&1 else TU, PW, R0+4*r, T if r&1 else T2); put(a,base+r, TT if r&1 else TU, tmp=18+(r&1))
        cmul(a, PW, PW, E128, T)
        if aa==2:
            for ks in range(4):
                a(f'v_mfma_f32_16x16x32_bf16 {vr(KACC,4)}, {vr(AF+4*ks,4)}, {vr(BF+4*ks,4)}, ' + ('0' if ks==0 else vr(KACC,4)))
    for aa in (4,5,6,7):
        base=8+2*(aa-4)
        put(a,base,PW)
        cmul(a, TT, PW, R0+8, T2)
        cmul(a, TU, PW, E128, T)
        put(a,base+1,TT,tmp=18)
        a(f'v_mov_b32 v{PW}, v{TU}'); a(f'v_mov_b32 v{PW+1}, v{TU+1}')
    hook(4)
    AF2=108
    for ks in range(4): a(f'ds_read_b128 {vr(AF2+4*ks,4)}, v{vTRD} offset:{64*ks}')
    for aa in range(8,17):
        put(a,aa-8,PW,tmp=18+(aa&1))
        if aa<16: cmul(a, PW, PW, E128, T)
        if aa==10:
            for ks in range(4):
                a(f'v_mfma_f32_16x16x32_bf16 {vr(KACC+4,4)}, {vr(AF2+4*ks,4)}, {vr(BF+4*ks,4)}, ' + ('0' if ks==0 else vr(KACC+4,4)))
    for ks in range(4): a(f'ds_read_b128 {vr(AF+4*ks,4)}, v{vTRD} offset:{64*ks}')
    a('v_and_b32 v30, 15, v2'); a('v_lshrrev_b32 v31, 4, v2')
    a(f's_mul_i32 s7, s63, {KDP}'); a(f's_add_u32 s7, s7, {KD}')
    a(f's_mul_i32 s8, s64, {KDH}'); a('s_add_u32 s7, s7, s8')
    a('v_lshrrev_b32 v32, 1, v31'); a('v_lshlrev_b32 v32, 7, v32')
    a('v_and_b32 v33, 1, v31'); a('v_lshl_add_u32 v32, v33, 2, v32'); a('v_lshl_add_u32 v32, v30, 3, v32')
    a('v_lshlrev_b32 v32, 2, v32'); a('v_add_u32 v32, s7, v32')
    a('v_cmp_gt_u32 vcc, 2, v31')
    a('v_lshlrev_b32 v33, 2, v30'); a('v_lshlrev_b32 v34, 1, v30'); a('v_cndmask_b32 v33, v34, v33, vcc')
    a('v_lshl_add_u32 v33, v31, 6, v33'); a('v_lshlrev_b32 v33, 2, v33'); a('v_add_u32 v33, s7, v33')
    a('v_mov_b32 v34, 128'); a('v_cndmask_b32 v34, v34, 8, vcc'); a('v_add_u32 v34, v33, v34')
    a('v_lshl_add_u32 v35, v31, 6, v30'); a('v_lshlrev_b32 v35, 2, v35'); a('v_add_u32 v35, s7, v35')
    for r in range(4): a(f'ds_write_b32 v32, v{KACC+r} offset:{4*r}')
    a(f'ds_write_b32 v33, v{KACC+4} offset:1024'); a(f'ds_write_b32 v33, v{KACC+5} offset:1028')
    a(f'ds_write_b32 v34, v{KACC+6} offset:1024'); a(f'ds_write_b32 v34, v{KACC+7} offset:1028')
    for ks in range(4):
        a(f'v_mfma_f32_16x16x32_bf16 {vr(KACC+8,4)}, {vr(AF+4*ks,4)}, {vr(BF+4*ks,4)}, ' + ('0' if ks==0 else vr(KACC+8,4)))
    for r in range(4): a(f'ds_write_b32 v35, v{KACC+8+r} offset:{2048+64*r}')

def lds_wait(a, name, base, val, t=20):
    a(f'v_mov_b32 v{t+4}, {FL+base}')
    a('s_mov_b32 s13, 0')
    a.label(f'L_lw_{name}')
    a(f'ds_read_b128 {vr(t,4)}, v{t+4}')
    a('s_waitcnt lgkmcnt(0)')
    a(f'v_min_u32 v{t}, v{t}, v{t+1}'); a(f'v_min_u32 v{t+2}, v{t+2}, v{t+3}'); a(f'v_min_u32 v{t}, v{t}, v{t+2}')
    a(f'v_readfirstlane_b32 s7, v{t}')
    a('s_add_u32 s13, s13, 1')
    a(f's_cmp_ge_u32 s7, {val}'); a(f's_cbranch_scc1 L_lwd_{name}')
    a('s_cmp_lt_u32 s13, 0x400000'); a(f's_cbranch_scc1 L_lw_{name}')
    a.label(f'L_lwd_{name}')
def lds_signal(a, val, t=20, extra=0):
    a('s_waitcnt lgkmcnt(0)')
    a('s_lshl_b32 s7, s6, 2'); a(f's_add_u32 s7, s7, {FL+extra}')
    a(f'v_mov_b32 v{t}, s7'); a(f'v_mov_b32 v{t+1}, {val}')
    a(f'ds_write_b32 v{t}, v{t+1}')

ACC=128; FR=64; GR=32
def acc(j,s): return vr(ACC+(j*4+s)*4,4)
def fload(a, t=16):
    a(f'v_and_b32 v{t}, 3, v2'); a(f'v_bfe_u32 v{t+1}, v2, 2, 2'); a(f'v_sub_u32 v{t}, v{t}, v{t+1}')
    a(f'v_lshlrev_b32 v{t}, 3, v{t}'); a(f'v_lshrrev_b32 v{t+1}, 4, v2'); a(f'v_lshlrev_b32 v{t+1}, 6, v{t+1}'); a(f'v_sub_u32 v{t}, v{t}, v{t+1}')
    a(f's_mul_i32 s7, s6, {KPITCH}'); a(f's_add_u32 s7, s7, {KARR+224}')
    a(f'v_add_u32 v{t}, s7, v{t}')
    for i in range(16):
        a(f'ds_read_b64_tr_b16 {vr(FR+4*i,2)}, v{t} offset:{256*i+32}')
        a(f'ds_read_b64_tr_b16 {vr(FR+4*i+2,2)}, v{t} offset:{256*i}')

def zero_upads(a, base, t=16):
    for i in range(4): a(f'v_mov_b32 v{t+i}, 0')
    a(f'v_bfe_u32 v{t+4}, v2, 3, 2'); a(f'v_mul_u32_u24 v{t+4}, {UPH}, v{t+4}')
    a(f'v_and_b32 v{t+5}, 7, v2'); a(f'v_lshl_add_u32 v{t+4}, v{t+5}, 4, v{t+4}')
    a(f's_mul_i32 s7, s63, {UCC}'); a(f's_add_u32 s7, s7, {base}')
    a(f'v_add_u32 v{t+4}, s7, v{t+4}')
    a(f'ds_write_b128 v{t+4}, {vr(t,4)}')

XR=12; KR=16; PP=20; QQ=24; CA=(27,28,29); CB=(30,31,11)
def gather_addr(a):
    a('v_lshrrev_b32 v3, 2, v2'); a('v_lshlrev_b32 v3, 4, v3'); a('v_and_b32 v4, 3, v2'); a('v_add_u32 v3, v3, v4')
    a('s_lshl_b32 s7, s63, 8'); a('v_add_u32 v3, s7, v3')
    a('v_lshlrev_b32 v3, 11, v3'); a('s_lshl_b32 s7, s60, 1'); a('v_add_u32 v3, s7, v3')
def gather_issue(a, regs, half):
    base = sp(P_X) if half==0 else 's[68:69]'
    for r in range(4):
        if r==0: a(f'global_load_dwordx2 {vr(regs[0],2)}, v3, {base}')
        else:
            a(f'v_add_u32 v4, {8192*r}, v3')
            a(f'global_load_dwordx2 {vr(regs[r],2)}, v4, {base}')
def gather_write(a, regs, half, tmp, vaddr):
    L=[]
    for ch in range(4):
        d=ch>>1; sel='s58' if (ch&1)==0 else 's59'
        t=tmp+2*(ch&1)
        L.append(f'v_perm_b32 v{t}, v{regs[1]+d}, v{regs[0]+d}, {sel}')
        L.append(f'v_perm_b32 v{t+1}, v{regs[3]+d}, v{regs[2]+d}, {sel}')
        L.append(f'ds_write_b64 v{vaddr}, {vr(t,2)} offset:{ch*UCC+512*half}')
    return L

def expand_own(a, hook=lambda i: None):
    a(f's_mul_i32 s7, s63, {KDP}'); a(f's_add_u32 s7, s7, {KD}')
    a('v_lshlrev_b32 v20, 5, v2'); a('v_lshlrev_b32 v21, 4, v2'); a('v_add_u32 v21, 512, v21')
    a('v_cmp_gt_u32 vcc, 32, v2'); a('v_cndmask_b32 v20, v21, v20, vcc'); a('v_add_u32 v20, s7, v20')
    a('v_lshlrev_b32 v21, 3, v2'); a('v_add_u32 v21, s7, v21')
    a('v_lshlrev_b32 v22, 2, v2'); a('v_add_u32 v22, s7, v22')
    for h,o in ((0,0),(1,KDH)):
        a(f'ds_read_b128 {vr(32+16*h,4)}, v20 offset:{o}'); a(f'ds_read_b128 {vr(36+16*h,4)}, v20 offset:{o+16}')
        a(f'ds_read_b64 {vr(40+16*h,2)}, v21 offset:{o+384*4}'); a(f'ds_read_b32 v{42+16*h}, v21 offset:{o+384*4+8}')
        a(f'ds_read2_b32 {vr(44+16*h,2)}, v22 offset0:0 offset1:1' if False else f'ds_read_b32 v{44+16*h}, v22 offset:{o+512*4}')
        a(f'ds_read_b32 v{45+16*h}, v22 offset:{o+513*4}')
        a(f'ds_read_b32 v{46+16*h}, v22 offset:{o+576*4}'); a(f'ds_read_b32 v{47+16*h}, v22 offset:{o+577*4}')
    hook(5)
    a('v_lshlrev_b32 v23, 4, v2'); a(f's_mul_i32 s8, s63, {KPITCH}'); a(f's_add_u32 s8, s8, {KARR+32}'); a('v_add_u32 v23, s8, v23')
    a('v_and_b32 v24, 1, v2'); a('v_cmp_eq_u32 s[14:15], 1, v24')
    for r in list(range(32,43))+list(range(44,48)): a(f'v_add_f32 v{r}, v{r}, v{r+16}')
    V=lambda i: 32+i
    pat=[0,0,1,2,2,2,3,4]
    for e in range(8):
        if pat[e]==e: a(f'v_mov_b32 v{48+e}, v{V(e)}')
        else: a(f'v_cndmask_b32 v{48+e}, v{V(pat[e])}, v{V(e)}, vcc')
    for e in range(4): a(f'v_cvt_pk_bf16_f32 v{56+e}, v{48+2*e}, v{49+2*e}')
    a(f'ds_write_b128 v23, v[56:59]')
    hook(6)
    a('v_cvt_pk_bf16_f32 v56, v40, v40'); a('v_cvt_pk_bf16_f32 v57, v40, v41'); a('v_cvt_pk_bf16_f32 v58, v41, v41'); a('v_cvt_pk_bf16_f32 v59, v42, v42')
    a('s_nop 0')
    a(f'ds_write_b128 v23, v[56:59] offset:1024')
    for k,(A,B) in enumerate(((44,45),(46,47))):
        o=60 if k==0 else 48
        a(f'v_cndmask_b32 v52, v{A}, v{B}, s[14:15]')
        a(f'v_cvt_pk_bf16_f32 v{o}, v{A}, v{A}'); a(f'v_cvt_pk_bf16_f32 v{o+1}, v{A}, v{A}')
        a(f'v_cvt_pk_bf16_f32 v{o+2}, v52, v{B}'); a(f'v_cvt_pk_bf16_f32 v{o+3}, v{B}, v{B}')
        a(f'ds_write_b128 v23, {vr(o,4)} offset:{2048+1024*k}')

def conv_addr_common(a, ubase_own, exbase):
    a('v_and_b32 v20, 15, v2'); a('v_lshrrev_b32 v21, 4, v2')
    a(f's_mul_i32 s7, s63, {UCC}'); a(f's_add_u32 s8, s7, {ubase_own+8}')
    a('v_lshlrev_b32 v3, 3, v20'); a('v_lshl_add_u32 v3, v21, 4, v3'); a('v_add_u32 v3, s8, v3')
    a(f's_add_u32 s8, s7, {UX+128}')
    a('v_lshlrev_b32 v4, 3, v20'); a('v_lshl_add_u32 v4, v21, 1, v4'); a('v_add_u32 v4, s8, v4')
    a('s_lshl_b32 s8, s63, 1'); a(f's_add_u32 s8, s8, {exbase}')
    a('v_mul_u32_u24 v5, 576, v21'); a('v_lshl_add_u32 v5, v20, 3, v5'); a('v_add_u32 v5, s8, v5')
    a('v_subrev_u32 v7, 16, v2'); a('v_add_u32 v23, 47, v2')
    a('v_cmp_gt_u32 vcc, 16, v2'); a('v_cndmask_b32 v7, v7, v23, vcc')
    a('v_cmp_eq_u32 s[70:71], 0, v2'); a('v_mov_b32 v23, 63'); a('v_cndmask_b32 v7, v7, v23, s[70:71]')
    a('v_lshlrev_b32 v7, 2, v7')
    for r in list(range(XR,XR+8))+list(CA)+list(CB): a(f'v_mov_b32 v{r}, 0')

def gread(q, buf):
    L=[]
    for s in range(4):
        L.append(f'ds_read_b64 {vr(GR+16*buf+4*s,2)}, v3 offset:{s*UPH+64*(q+1)}')
        L.append(f'ds_read_b64 {vr(GR+16*buf+4*s+2,2)}, v3 offset:{s*UPH+64*(q+1)+8}')
    return L
def mfmas(q):
    buf=(q+1)&1; j0=max(0,(q+1)//2); L=[]
    for s in range(4):
        for j in range(j0,8):
            c='0' if q==-1 else acc(j,s)
            L.append(f'v_mfma_f32_16x16x32_bf16 {acc(j,s)}, {vr(FR+4*(2*j-q),4)}, {vr(GR+16*buf+4*s,4)}, {c}')
    return L
def stage1(j, typ):
    D=lambda s,r: f'v{ACC+(j*4+s)*4+r}'
    cin = CA if j%2==0 else CB; cout= CB if j%2==0 else CA
    E=[]; L=[]
    if typ!=2:
        for r in range(4): E.append(f'ds_read_u16_d16_hi v{XR+r}, v4 offset:{r*UPH+128*j}')
    if typ==1:
        for r in range(4): E.append(f'ds_read_u16_d16_hi v{KR+r}, v6 offset:{r*UPH+128*j}')
    E += [f'v_add_f32 v{QQ}, {D(1,3)}, {D(2,2)}', f'v_add_f32 v{QQ+1}, {D(2,3)}, {D(3,2)}', f'v_add_f32 v{QQ}, v{QQ}, {D(3,1)}',
          f'ds_bpermute_b32 v{cout[1]}, v7, v{QQ+1}', f'ds_bpermute_b32 v{cout[2]}, v7, {D(3,3)}', f'ds_bpermute_b32 v{cout[0]}, v7, v{QQ}',
          f'v_add_f32 v{PP+1}, {D(0,1)}, {D(1,0)}', f'v_add_f32 v{PP+2}, {D(0,2)}, {D(1,1)}', f'v_add_f32 v{PP+3}, {D(0,3)}, {D(1,2)}',
          f'v_add_f32 v{PP+2}, v{PP+2}, {D(2,0)}', f'v_add_f32 v{PP+3}, v{PP+3}, {D(2,1)}', f'v_add_f32 v{PP+3}, v{PP+3}, {D(3,0)}']
    for r in range(3): L.append(f'v_cndmask_b32 v{QQ+r}, v{cout[r]}, v{cin[r]}, s[70:71]')
    L += [f'v_add_f32 v{PP}, {D(0,0)}, v{QQ}', f'v_add_f32 v{PP+1}, v{PP+1}, v{QQ+1}', f'v_add_f32 v{PP+2}, v{PP+2}, v{QQ+2}']
    L += [f'v_cvt_pk_bf16_f32 v{QQ}, v{PP}, v{PP+1}', f'v_cvt_pk_bf16_f32 v{QQ+1}, v{PP+2}, v{PP+3}']
    if typ==0:
        L += [f'v_lshlrev_b32 v{PP}, 16, v{QQ}', f'v_and_b32 v{PP+1}, 0xffff0000, v{QQ}',
              f'v_lshlrev_b32 v{PP+2}, 16, v{QQ+1}', f'v_and_b32 v{PP+3}, 0xffff0000, v{QQ+1}']
        for r in range(4): L.append(f'v_fmac_f32 v{PP+r}, v{XR+r}, v10')
        L += [f'v_cvt_pk_bf16_f32 v{QQ}, v{PP}, v{PP+1}', f'v_cvt_pk_bf16_f32 v{QQ+1}, v{PP+2}, v{PP+3}']
    o=j*2304
    L += [f'ds_write_b16 v5, v{QQ} offset:{o}', f'ds_write_b16_d16_hi v5, v{QQ} offset:{o+144}',
          f'ds_write_b16 v5, v{QQ+1} offset:{o+288}', f'ds_write_b16_d16_hi v5, v{QQ+1} offset:{o+432}']
    return E,L
def gread_to(q, base):
    L=[]
    for s_ in range(4):
        L.append(f'ds_read_b64 {vr(base+4*s_,2)}, v3 offset:{s_*UPH+64*(q+1)}')
        L.append(f'ds_read_b64 {vr(base+4*s_+2,2)}, v3 offset:{s_*UPH+64*(q+1)+8}')
    return L
GTAIL={9:GR+16*((9+1)&1),10:96,11:128,12:144,13:160,14:176}
def conv_loop(a, typ, sig, pre):
    for ins in gread(-1,0): a(ins)
    for q in range(-1,9):
        early=[]; late=[]; j=None
        early += gread(q+1,(q+2)&1)
        if q==8:
            for qq in range(10,15): early += gread_to(qq, GTAIL[qq])
        if q>=1 and q%2==1:
            j=(q-1)//2
            E,L=stage1(j,typ); early+=E; late+=L
        emit(a, mfmas(q), early, late)
        if j is not None: sig(j)
        if q in (0,2,6): a.stamp(pre+'q%d'%q)
    for j in (5,6,7):
        mf=[f'v_mfma_f32_16x16x32_bf16 {acc(j,s_)}, {vr(FR+4*(2*j-q),4)}, {vr(GTAIL[q]+4*s_,4)}, {acc(j,s_)}' for q in range(9,2*j+1) for s_ in range(4)]
        E,L=stage1(j-1,typ)
        emit(a, mf, E, L)
        sig(j-1)
    a.stamp(pre+'q14')
    E,L=stage1(7,typ)
    for ins in E+L: a(ins)
    sig(7)

def emit(a, mf, early, late):
    n=len(mf); slots=[[] for _ in range(n)]; k=0
    for ins in early:
        slots[min(n-1,k//2)].append(ins); k+=1
    start=min(n-1,max((len(early)+1)//2+3, n-(len(late)+1)//2)); k=0
    for ins in late:
        slots[min(n-1,start+k//2)].append(ins); k+=1
    for i in range(n):
        a(mf[i])
        for ins in slots[i]: a(ins)

H1=(128,130,132,134); H2=(136,138,140,142)
XT,XO=128,144
def tile_addr(a):
    a('v_lshrrev_b32 v5, 3, v2'); a('v_and_b32 v6, 7, v2')
    a('v_lshlrev_b32 v3, 11, v5'); a('v_lshl_add_u32 v3, v6, 4, v3')
    a('s_lshl_b32 s7, s5, 2'); a('s_add_u32 s7, s7, s63'); a('s_lshl_b32 s7, s7, 16')
    a('s_lshl_b32 s8, s4, 7'); a('s_add_u32 s7, s7, s8')
    a('v_add_u32 v3, s7, v3')
def store_addr(a, v, wsoff, sb):
    a(f'v_and_b32 v{v}, 15, v2'); a(f'v_lshlrev_b32 v{v}, 12, v{v}'); a('v_lshrrev_b32 v20, 4, v2'); a(f'v_lshl_add_u32 v{v}, v20, 4, v{v}')
    a('s_lshl_b32 s50, s63, 6'); a(f'v_add_u32 v{v}, s50, v{v}')
    a('s_lshl_b32 s50, s4, 18'); a('s_lshl_b32 s51, s5, 8'); a('s_add_u32 s50, s50, s51'); a(f's_add_u32 s50, s50, {wsoff}')
    a(f's_add_u32 s{sb}, s{P_WS}, s50'); a(f's_addc_u32 s{sb+1}, s{P_WS+1}, 0')
def flag_store(a, arr, t):
    a('s_lshl_b32 s7, s4, 1');
    if arr: a('s_add_u32 s7, s7, 1')
    a('s_lshl_b32 s7, s7, 4'); a('s_add_u32 s7, s7, s5'); a('s_lshl_b32 s7, s7, 2'); a('s_add_u32 s7, s7, s63'); a('s_lshl_b32 s7, s7, 4')
    a(f'v_mov_b32 v{t}, s7'); a(f'v_mov_b32 v{t+1}, s{S_TAG}')
    a('s_mov_b64 exec, 1')
    a(f'global_store_dword v{t}, v{t+1}, {sp(P_WS)} sc1')
    a('s_mov_b64 exec, -1')
def poll(a, arr, name, va, vd):
    a('s_cmp_eq_u32 s63, 0'); a(f's_cbranch_scc0 L_pw{name}')
    a('s_lshl_b32 s7, s4, 1')
    if arr: a('s_add_u32 s7, s7, 1')
    a('s_lshl_b32 s7, s7, 10'); a(f'v_lshlrev_b32 v{va}, 4, v2'); a(f'v_add_u32 v{va}, s7, v{va}')
    a('s_mov_b32 s13, 0')
    a.label(f'L_poll{name}')
    a(f'global_load_dword v{vd}, v{va}, {sp(P_WS)} sc1')
    a('s_waitcnt vmcnt(0)')
    a(f'v_cmp_ne_u32 vcc, s{S_TAG}, v{vd}')
    a(f's_cbranch_vccz L_polled{name}')
    a('s_add_u32 s13, s13, 1'); a('s_cmp_lt_u32 s13, 0x40000'); a(f's_cbranch_scc0 L_polled{name}')
    a('s_sleep 2'); a(f's_branch L_poll{name}')
    a.label(f'L_polled{name}')
    a(f'v_mov_b32 v{va}, {FL+48+16*arr}'); a(f'v_mov_b32 v20, 1'); a('v_mov_b32 v21, 1'); a('v_mov_b32 v22, 1'); a('v_mov_b32 v23, 1')
    a(f'ds_write_b128 v{va}, v[20:23]')
    a(f's_branch L_pd{name}')
    a.label(f'L_pw{name}')
    lds_wait(a, 'p'+name, 48+16*arr, 1, t=20)
    a.label(f'L_pd{name}')
    a('s_waitcnt lgkmcnt(0)'); a.lgkm_sync()
def uload(a, wsoff, regs, ldsbase, vt, vl):
    a('s_lshl_b32 s7, s4, 18'); a('s_lshl_b32 s8, s5, 14'); a('s_add_u32 s7, s7, s8'); a('s_lshl_b32 s8, s63, 12'); a('s_add_u32 s7, s7, s8')
    a(f's_add_u32 s7, s7, {wsoff}'); a(f's_add_u32 s68, s{P_WS}, s7'); a(f's_addc_u32 s69, s{P_WS+1}, 0')
    a(f'v_lshlrev_b32 v{vt}, 4, v2')
    for h in range(4): a(f'global_load_dwordx4 {vr(regs+4*h,4)}, v{vt}, s[68:69] offset:{1024*h} {OPT.get("uld","none").replace("none","")}'.rstrip())
    a(f's_mul_i32 s7, s63, {UCC}'); a(f's_add_u32 s7, s7, {ldsbase+128}')
    a(f'v_and_b32 v{vl}, 3, v2'); a(f'v_mul_u32_u24 v{vl}, {UPH}, v{vl}'); a(f'v_lshrrev_b32 v{vt}, 4, v2'); a(f'v_lshl_add_u32 v{vl}, v{vt}, 6, v{vl}')
    a(f'v_bfe_u32 v{vt}, v2, 2, 2'); a(f'v_lshl_add_u32 v{vl}, v{vt}, 4, v{vl}'); a(f'v_add_u32 v{vl}, s7, v{vl}')

def ahook(a, i):
    HA=int(OPT.get('ha',2)); HB=int(OPT.get('hb',3))
    if i==HA:
        a('s_waitcnt lgkmcnt(0)')
        a('s_cmp_lg_u32 s64, 0'); a(f's_cbranch_scc1 L_ah{i}')
        a('s_waitcnt vmcnt(1)')
        for h in range(4): a(f'ds_write_b128 v6, {vr(XT+4*h,4)} offset:{1152*h}')
        for cg in range(4):
            for h in range(2): a(f'ds_read_b64_tr_b16 {vr(XO+4*cg+2*h,2)}, v7 offset:{2304*h+32*cg}')
        for cg in range(4):
            if cg: a(f'v_add_u32 v4, {65536*cg}, v8')
            a(f'global_store_dwordx4 {"v4" if cg else "v8"}, {vr(XO+4*cg,4)}, s[54:55] sc1')
        a('s_waitcnt lgkmcnt(0)')
        a.label(f'L_ah{i}')
    if OPT.get('xfl4') and i==int(OPT.get('xfi',4)):
        a('s_cmp_lg_u32 s64, 0'); a('s_cbranch_scc1 L_xf4')
        a('s_waitcnt vmcnt(0)')
        a('v_readfirstlane_b32 s75, v107')
        a(f's_mul_i32 s{S_TAG}, s75, 0x9e3779b1'); a(f's_add_u32 s{S_TAG}, s{S_TAG}, 0x7f4a7c15')
        flag_store(a, 0, 4)
        a.label('L_xf4')
    if i==HB:
        a('s_cmp_eq_u32 s64, 0'); a(f's_cbranch_scc1 L_bh{i}')
        for h in range(4):
            if h: a(f'v_add_u32 v4, {0x4000*h}, v3')
            a(f'global_load_dwordx4 {vr(VT+4*h,4)}, {"v4" if h else "v3"}, {sp(P_V)} nt')
        for cg in range(4): a(f'global_load_dwordx2 {vr(SHW8+2*cg,2)}, v9, {sp(P_SHK)} offset:{128*cg}')
        a(f'global_load_dword v107, v11, {sp(P_WS)} sc1')
        a.label(f'L_bh{i}')

KT,VT = 128,144
HL,SHW8=224,228
AGX,AGW,AG=224,240,172
def gate(a):
    GX=AGX; GW=AGW; A=AG
    a(f'v_mov_b32 v{A}, 0'); a(f'v_mov_b32 v{A+1}, 0'); a(f'v_mov_b32 v{A+2}, 0x3f803f80')
    for i in range(8):
        a(f'v_lshlrev_b32 v{A+4}, 16, v{GW+i}'); a(f'v_and_b32 v{A+5}, 0xffff0000, v{GW+i}')
        for rr in range(2):
            t=A+6+2*rr
            a(f'v_lshlrev_b32 v{t}, 16, v{GX+8*rr+i}'); a(f'v_and_b32 v{t+1}, 0xffff0000, v{GX+8*rr+i}')
            a(f'v_mul_f32 v{t}, v{t}, v{A+4}'); a(f'v_mul_f32 v{t+1}, v{t+1}, v{A+5}')
            a(f'v_cvt_pk_bf16_f32 v{t}, v{t}, v{t+1}')
            a(f'v_dot2c_f32_bf16 v{A+rr}, v{t}, v{A+2}')
    for m in ('quad_perm:[1,0,3,2]','quad_perm:[2,3,0,1]','row_half_mirror','row_mirror'):
        for rr in range(2): a(f'v_add_f32_dpp v{A+rr}, v{A+rr}, v{A+rr} {m} row_mask:0xf bank_mask:0xf')
    for rr in range(2):
        for i,l in enumerate((0,16,32,48)): a(f'v_readlane_b32 s{50+4*rr+i}, v{A+rr}, {l}')
    for rr in range(2):
        a(f'v_mov_b32 v{A+4+rr}, s{50+4*rr}')
        for i in range(1,4): a(f'v_add_f32 v{A+4+rr}, s{50+4*rr+i}, v{A+4+rr}')
    a('v_cmp_eq_u32 vcc, 1, v2'); a(f'v_cndmask_b32 v{A+4}, v{A+4}, v{A+5}, vcc')
    t=A+4
    a(f'v_cvt_pk_bf16_f32 v{t}, v{t}, v{t}'); a(f'v_and_b32 v{t}, 0xffff0000, v{t}')
    a(f'v_mul_f32 v{t}, 0xbfb8aa3b, v{t}'); a(f'v_exp_f32 v{t}, v{t}'); a(f'v_add_f32 v{t}, 1.0, v{t}'); a(f'v_rcp_f32 v{t}, v{t}')
    a(f'v_cvt_pk_bf16_f32 v{t}, v{t}, v{t}'); a(f'v_and_b32 v{t}, 0xffff0000, v{t}')
    a(f'v_mov_b32 v{t+1}, s{S_TAG}')
    a('s_lshl_b32 s56, s9, 3'); a(f's_add_u32 s56, s56, {WS_G}'); a(f'v_lshlrev_b32 v{A+8}, 3, v2'); a(f'v_add_u32 v{A+8}, s56, v{A+8}')
    a('s_mov_b64 exec, 3')
    a(f'global_store_dwordx2 v{A+8}, {vr(t,2)}, {sp(P_WS)} sc1')
    a('s_mov_b64 exec, -1')

def A_issue(a):
    a.auto_lgkm=False
    a(f'v_mov_b32 v11, {WS_EPOCH}')
    a(f'global_load_ushort v105, v13, {sp(P_DSKIP)}')
    for h in range(4):
        if h: a(f'v_add_u32 v4, {0x4000*h}, v3')
        a(f'global_load_dwordx4 {vr(XT+4*h,4)}, {"v4" if h else "v3"}, {sp(P_X)} nt')
    a(f'global_load_dword v107, v11, {sp(P_WS)} sc1')
    a.stamp('issued')
    a('s_lshr_b32 s7, s2, 3'); a('s_lshl_b32 s8, s6, 3'); a('s_add_u32 s7, s7, s8')
    a('s_cmp_ge_u32 s7, 48'); a('s_cselect_b32 s8, 48, 0'); a('s_sub_u32 s7, s7, s8')
    a('s_cmp_ge_u32 s7, 24'); a('s_cselect_b32 s8, 24, 0'); a('s_sub_u32 s7, s7, s8')
    a('s_lshl_b32 s7, s7, 10'); a('v_lshlrev_b32 v1, 4, v2'); a('v_add_u32 v1, s7, v1')
    a('v_cmp_gt_u32 vcc, L_codeend-L_pc-16, v1'); a('s_and_saveexec_b64 s[14:15], vcc'); a('s_cbranch_execz L_nopf1')
    a('global_load_dwordx4 v[248:251], v1, s[76:77]')
    a.label('L_nopf1'); a('s_mov_b64 exec, s[14:15]')
    a.label('L_nopf')
    for i in range(4): a(f'v_mov_b32 v{16+i}, 0')
    a(f's_mul_i32 s7, s63, {KPITCH}'); a('v_and_b32 v20, 1, v2'); a('v_lshlrev_b32 v20, 4, v20'); a('v_add_u32 v20, s7, v20')
    a(f'ds_write_b128 v20, v[16:19] offset:{KARR}')
    store_addr(a, 8, WS_UX, 54)
    a(f's_mul_i32 s7, s63, {UCC}'); a(f's_add_u32 s7, s7, {UX}')
    a('v_mul_u32_u24 v7, 144, v5'); a('v_lshl_add_u32 v6, v6, 4, v7'); a('v_add_u32 v6, s7, v6')
    a('v_bfe_u32 v7, v2, 2, 2'); a('v_lshrrev_b32 v20, 4, v2'); a('v_lshl_add_u32 v7, v7, 2, v20'); a('v_mul_u32_u24 v7, 144, v7')
    a('v_and_b32 v20, 3, v2'); a('v_lshl_add_u32 v7, v20, 3, v7'); a('v_add_u32 v7, s7, v7')
    a(f's_waitcnt vmcnt(6)')

def A_rest(a):
    a('s_waitcnt lgkmcnt(0)' if OPT.get('xfl4') else 's_waitcnt vmcnt(0) lgkmcnt(0)')
    a.lgkm_sync()
    a.stamp('kgen')
    if not OPT.get('xfl4'):
        a('v_readfirstlane_b32 s75, v107')
        a(f's_mul_i32 s{S_TAG}, s75, 0x9e3779b1'); a(f's_add_u32 s{S_TAG}, s{S_TAG}, 0x7f4a7c15')
        flag_store(a, 0, 4)
    a('s_lshl_b32 s9, s2, 3'); a('s_lshl_b32 s8, s63, 1'); a('s_add_u32 s9, s9, s8')
    a('v_lshlrev_b32 v9, 4, v2'); a('s_lshl_b32 s8, s9, 11'); a('v_add_u32 v8, s8, v9'); a('v_add_u32 v4, 0x800, v8')
    a(f'global_load_dwordx4 {vr(AGX,4)}, v8, {sp(P_X)} nt'); a(f'global_load_dwordx4 {vr(AGX+4,4)}, v8, {sp(P_X)} offset:1024 nt')
    a(f'global_load_dwordx4 {vr(AGX+8,4)}, v4, {sp(P_X)} nt'); a(f'global_load_dwordx4 {vr(AGX+12,4)}, v4, {sp(P_X)} offset:1024 nt')
    a(f'global_load_dwordx4 {vr(AGW,4)}, v9, {sp(P_GW)}'); a(f'global_load_dwordx4 {vr(AGW+4,4)}, v9, {sp(P_GW)} offset:1024')
    a('v_lshlrev_b32 v10, 16, v105')
    lds_wait(a,'kd',32,1,t=20)
    a.lgkm_sync()
    a.stamp('bar1')
    expand_own(a)
    zero_upads(a, UX, t=16)
    fload(a, t=24)
    a.stamp('expand')
    poll(a, 0, 'x', 3, 4)
    a.stamp('xpolled')
    uload(a, WS_UX, 128, UX, 3, 6)
    a('s_waitcnt vmcnt(4)')
    gate(a)
    a.stamp('gate')
    conv_addr_common(a, UX, EXA)
    a('s_waitcnt vmcnt(1)')
    a.stamp('gath1')
    for h in range(4): a(f'ds_write_b128 v6, {vr(128+4*h,4)} offset:{h*256}')
    lds_signal(a, 1, t=20)
    lds_wait(a,'a1b',16,1,t=20)
    a.stamp('xready')
    if OPT.get('pa'): a(f"s_setprio {OPT['pa']}")
    a.lgkm_sync()
    conv_loop(a, 0, lambda j: None, 'a')
    if OPT.get('pa'): a('s_setprio 0')
    a('s_lshl_b32 s7, s63, 6'); a('v_add_u32 v22, s7, v2')
    a(f'v_lshlrev_b32 v16, 3, v22'); a(f'v_add_u32 v16, {WS_G}, v16')
    for i in range(1,4): a(f'v_add_u32 v{16+i}, {4096*i}, v16')
    a('s_lshl_b32 s7, s60, 1'); a('v_mov_b32 v6, s7')
    a(f'global_load_dwordx2 v[4:5], v6, {sp(P_SSMD)}')
    for j in range(8): a(f'global_load_dwordx2 {vr(128+2*j,2)}, v{16+(j>>1)}, {sp(P_WS)} offset:{2048*(j&1)} sc1')
    a('v_and_b32 v20, 15, v22')
    a('v_mul_u32_u24 v9, 144, v20'); a('v_lshrrev_b32 v23, 4, v22'); a('v_lshl_add_u32 v9, v23, 3, v9')
    a(f'v_add_u32 v7, {EXA}, v9'); a(f'v_add_u32 v9, {EXB}, v9')
    a('s_lshl_b32 s7, s60, 1'); a('v_lshlrev_b32 v8, 11, v22'); a('v_add_u32 v8, s7, v8')
    a('v_and_b32 v20, 3, v22'); a(f'v_mul_u32_u24 v3, {UPH}, v20'); a('v_lshrrev_b32 v20, 2, v22'); a('v_lshl_add_u32 v3, v20, 1, v3')
    a(f'v_add_u32 v6, {UK+128}, v3'); a(f'v_add_u32 v3, {UX+128}, v3')
    XP,KP,AP=64,96,144
    lds_signal(a, 2, t=20)
    for i in range(64): a(f'v_mov_b32 v{XP+i}, 0')
    a(f's_mov_b32 s72, s{P_OUT}'); a(f's_mov_b32 s73, s{P_OUT+1}')
    OSC=OPT.get('osc','')
    lds_wait(a,'a2',0,2,t=20); a.lgkm_sync()
    for j in range(8):
        for ch in range(4): a(f'ds_read_u16_d16_hi v{XP+4*j+ch}, v3 offset:{ch*UCC+128*j}')
        a(f'ds_read_b64 {vr(AP+2*j,2)}, v7 offset:{j*2304}')
    a('s_waitcnt vmcnt(0)')
    a('v_lshlrev_b32 v60, 16, v4'); a('v_and_b32 v61, 0xffff0000, v4'); a('v_lshlrev_b32 v62, 16, v5'); a('v_and_b32 v63, 0xffff0000, v5')
    a.stamp('gok')
    lds_wait(a,'kvl',16,2,t=20); a.lgkm_sync()
    for j in range(8):
        for ch in range(4): a(f'ds_read_u16_d16_hi v{KP+4*j+ch}, v6 offset:{ch*UCC+128*j}')
    for j in range(8):
        a('s_mov_b32 s13, 0')
        a.label(f'L_gc{j}')
        a(f'v_cmp_ne_u32 vcc, s{S_TAG}, v{129+2*j}'); a(f's_cbranch_vccz L_gok{j}')
        a('s_add_u32 s13, s13, 1'); a('s_cmp_lt_u32 s13, 0x10000'); a(f's_cbranch_scc0 L_gok{j}')
        a('s_sleep 8')
        a(f'global_load_dwordx2 {vr(128+2*j,2)}, v{16+(j>>1)}, {sp(P_WS)} offset:{2048*(j&1)} sc1'); a('s_waitcnt vmcnt(0)')
        a(f's_branch L_gc{j}')
        a.label(f'L_gok{j}')
        for h in range(2):
            a(f'v_lshlrev_b32 v{40+2*h}, 16, v{AP+2*j+h}'); a(f'v_and_b32 v{41+2*h}, 0xffff0000, v{AP+2*j+h}')
        lds_wait(a,f't{j}',16,j+3,t=20); a.lgkm_sync()
        a(f'ds_read_b64 {vr(34,2)}, v9 offset:{j*2304}')
        for h in range(2):
            a(f'v_lshlrev_b32 v{44+2*h}, 16, v{34+h}'); a(f'v_and_b32 v{45+2*h}, 0xffff0000, v{34+h}')
        for i in range(4): a(f'v_fmac_f32 v{44+i}, v{KP+4*j+i}, v{60+i}')
        for i in range(4): a(f'v_mul_f32 v{44+i}, v{44+i}, v{XP+4*j+i}')
        a('v_cvt_pk_bf16_f32 v36, v44, v45'); a('v_cvt_pk_bf16_f32 v37, v46, v47')
        for h in range(2):
            a(f'v_lshlrev_b32 v{44+2*h}, 16, v{36+h}'); a(f'v_and_b32 v{45+2*h}, 0xffff0000, v{36+h}')
        for i in range(4): a(f'v_sub_f32 v{40+i}, v{40+i}, v{44+i}')
        for i in range(4): a(f'v_fmac_f32 v{44+i}, v{40+i}, v{128+2*j}')
        o=48+2*(j&1)
        a(f'v_cvt_pk_bf16_f32 v{o}, v44, v45'); a(f'v_cvt_pk_bf16_f32 v{o+1}, v46, v47')
        a(f'global_store_dwordx2 v8, {vr(o,2)}, s[72:73] {OSC}'.rstrip())
        a('s_add_u32 s72, s72, 0x80000'); a('s_addc_u32 s73, s73, 0')
        if j in (0,3,6): a.stamp('st2_%d'%j)

KT,VT,H = 128,144,160
SHW=164; W10,W32,vTR,vTRK,vST = 166,167,168,169,170
KO,VO,KVO = 176,208,216
GX,GW,SK = 224,240,108
HL,SHW8=224,228
def B_issue(a):
    a.auto_lgkm=False
    a('s_lshl_b32 s12, s4, 9')
    a('v_and_b32 v11, 15, v2'); a('v_lshlrev_b32 v9, 3, v11'); a('v_add_u32 v9, s12, v9')
    a(f'v_mov_b32 v11, {WS_EPOCH}')
    for i in range(4): a(f'v_mov_b32 v{HL+i}, 0')
    a(f'global_load_ushort v105, v13, {sp(P_SSMD)}')
    for h in range(4):
        if h: a(f'v_add_u32 v4, {0x4000*h}, v3')
        r = 'v3' if h==0 else 'v4'
        a(f'global_load_dwordx4 {vr(KT+4*h,4)}, {r}, {sp(P_K)} nt')
    a('s_add_u32 s7, s5, s63'); a('s_cmp_eq_u32 s7, 0'); a('s_cbranch_scc1 L_nohalo')
    a('v_cmp_gt_u32 vcc, 24, v2'); a('s_and_saveexec_b64 s[14:15], vcc')
    a('v_add_u32 v1, 0xffffe800, v3')
    a(f'global_load_dwordx4 {vr(HL,4)}, v1, {sp(P_K)} nt')
    a('s_mov_b64 exec, s[14:15]')
    a.label('L_nohalo')
    a.stamp('issued')
def B_calc(a):
    a(f's_mul_i32 s13, s63, {STGW}'); a(f's_add_u32 s13, s13, {STG}')
    a('v_mul_u32_u24 v7, 144, v5'); a('v_lshl_add_u32 v7, v6, 4, v7')
    a('v_add_u32 v98, s13, v7')
    a('v_and_b32 v5, 3, v2'); a('v_bfe_u32 v6, v2, 2, 2'); a('v_lshrrev_b32 v20, 4, v2')
    a(f'v_lshl_add_u32 v{vTR}, v6, 2, v20'); a(f'v_mul_u32_u24 v{vTR}, 144, v{vTR}')
    a(f'v_lshl_add_u32 v{vTR}, v5, 3, v{vTR}'); a(f'v_add_u32 v{vTR}, s13, v{vTR}')
    a(f'v_add_u32 v{vTRK}, v6, v20'); a(f'v_mul_u32_u24 v{vTRK}, 144, v{vTRK}')
    a(f'v_lshl_add_u32 v{vTRK}, v5, 3, v{vTRK}'); a(f'v_add_u32 v{vTRK}, s13, v{vTRK}')
    store_addr(a, vST, WS_U, 54)
    for i in range(4): a(f'v_mov_b32 v{16+i}, 0')
    a(f's_mul_i32 s8, s6, {KPITCH}'); a('v_and_b32 v20, 1, v2'); a('v_lshlrev_b32 v20, 4, v20'); a('v_add_u32 v20, s8, v20')
    a(f'ds_write_b128 v20, v[16:19] offset:{KARR}')
    a('s_lshl_b32 s8, s61, 12'); a('v_lshlrev_b32 v10, 4, v2'); a('v_add_u32 v14, s8, v10')
    a('s_lshl_b32 s9, s2, 3'); a('s_lshl_b32 s8, s63, 1'); a('s_add_u32 s9, s9, s8')
    a('s_lshl_b32 s8, s9, 11'); a('v_add_u32 v8, s8, v10')
    a('s_waitcnt vmcnt(5)')
def B_rest(a):
    a('s_waitcnt lgkmcnt(0)')
    a.stamp('kgen')
    lds_signal(a,1,t=20,extra=16)
    a.lgkm_sync()
    a('s_waitcnt vmcnt(0)')
    a.stamp('tiles')
    if OPT.get('pp'): a(f"s_setprio {OPT['pp']}")
    for h in range(4):
        a(f'ds_write_b128 v98, {vr(KT+4*h,4)} offset:{KS+432+1152*h}')
        a(f'ds_write_b128 v98, {vr(VT+4*h,4)} offset:{VS+1152*h}')
    a('v_cmp_gt_u32 vcc, 24, v2'); a('s_and_saveexec_b64 s[56:57], vcc')
    a(f'ds_write_b128 v98, {vr(HL,4)} offset:{KS}')
    a('s_mov_b64 exec, s[56:57]')
    a('v_readfirstlane_b32 s75, v107')
    a(f's_mul_i32 s{S_TAG}, s75, 0x9e3779b1'); a(f's_add_u32 s{S_TAG}, s{S_TAG}, 0x7f4a7c15')
    for i in range(8): a(f'v_alignbit_b32 v{SHW8+i}, v{SHW8+i}, v{SHW8+i}, 16')
    KO4=16; VO4=80; KV4=96
    for cg in range(4):
        for e in range(8): a(f'ds_read_b64_tr_b16 {vr(KO4+16*cg+2*e,2)}, v{vTRK} offset:{KS+576*e+32*cg}')
        for h in range(2): a(f'ds_read_b64_tr_b16 {vr(VO4+4*cg+2*h,2)}, v{vTR} offset:{VS+2304*h+32*cg}')
    for cg in range(4):
        W10=SHW8+2*cg; W32=SHW8+2*cg+1
        for e in range(8):
            d=KO4+16*cg+2*e; a(f'v_dot2_f32_bf16 v{d}, v{d}, v{W32}, 0')
        for e in range(8):
            d=KO4+16*cg+2*e; a(f'v_dot2c_f32_bf16 v{d}, v{d+1}, v{W10}')
        for e2 in range(4):
            d=KO4+16*cg+4*e2; vv=VO4+4*cg+e2
            a(f'v_lshlrev_b32 v{d+1}, 16, v{vv}'); a(f'v_and_b32 v{d+3}, 0xffff0000, v{vv}')
        for e2 in range(4):
            d=KO4+16*cg+4*e2
            a(f'v_mul_f32 v{d}, v{d}, v{d+1}'); a(f'v_mul_f32 v{d+2}, v{d+2}, v{d+3}')
        for e2 in range(4):
            d=KO4+16*cg+4*e2
            a(f'v_cvt_pk_bf16_f32 v{KV4+4*cg+e2}, v{d}, v{d+2}')
        if cg: a(f'v_add_u32 v4, {65536*cg}, v{vST}')
        a(f'global_store_dwordx4 {"v4" if cg else "v%d"%vST}, {vr(KV4+4*cg,4)}, s[54:55] sc1')
    a.stamp('stored')
    if OPT.get('pp'): a('s_setprio 0')
    lds_signal(a,1,t=20)
    def skl():
        for h in range(4): a(f'global_load_dwordx4 {vr(SK+4*h,4)}, v14, {sp(P_SSMK)} offset:{1024*h} nt')
    if OPT.get('skearly'):
        skl(); a('s_waitcnt vmcnt(4)')
    else: a('s_waitcnt vmcnt(0)')
    flag_store(a, 1, 172)
    a.stamp('flag')
    if not OPT.get('skearly'): skl()
    a('s_waitcnt vmcnt(1)' if OPT.get('skearly') else 's_waitcnt vmcnt(0)')
    a(f's_mul_i32 s7, s6, {KPITCH}'); a('v_add_u32 v7, s7, v10')
    for h in range(4): a(f'ds_write_b128 v7, {vr(SK+4*h,4)} offset:{KARR+32+1024*h}')
    fload(a, t=16)
    a.stamp('fload')
    a.auto_lgkm=False
    poll(a, 1, 'k', 6, 5)
    a.stamp('polled')
    uload(a, WS_U, GR, UK, 7, 0)
    conv_addr_common(a, UK, EXB)
    lds_wait(a,'b1',0,1,t=20)
    zero_upads(a, UK)
    a('s_cmp_eq_u32 s6, 4'); a('s_cbranch_scc0 L_noarr')
    lds_wait(a,'arr',16,1,t=20)
    a('s_mov_b64 exec, 1'); a('v_mov_b32 v9, 0'); a('v_mov_b32 v1, 1')
    a(f'global_atomic_add v8, v9, v1, {sp(P_DBG)} sc0')
    a('s_mov_b64 exec, -1')
    a('s_waitcnt vmcnt(1)'); a('s_branch L_arrd')
    a.label('L_noarr')
    a('s_waitcnt vmcnt(0)')
    a.label('L_arrd')
    for h in range(4): a(f'ds_write_b128 v0, {vr(GR+4*h,4)} offset:{h*256}')
    a('s_lshl_b32 s7, s6, 2'); a(f's_add_u32 s7, s7, {FL}'); a('v_mov_b32 v6, s7')
    a('v_mov_b32 v4, 2'); a('ds_write_b32 v6, v4')
    a.stamp('uwrite')
    if OPT.get('pb'): a(f"s_setprio {OPT['pb']}")
    a.auto_lgkm=True; a.lgkm_sync()
    a('s_waitcnt lgkmcnt(0)')
    def tsig(j):
        a(f'v_mov_b32 v4, {j+3}'); a('ds_write_b32 v6, v4')
    conv_loop(a, 2, tsig, 'b')
    a('s_waitcnt lgkmcnt(0)')
    a('s_cmp_eq_u32 s6, 4'); a('s_cbranch_scc0 L_nobump')
    a('s_waitcnt vmcnt(0)')
    a('v_readfirstlane_b32 s7, v8'); a('s_cmp_eq_u32 s7, 0xff'); a('s_cbranch_scc0 L_nobump')
    a('s_add_u32 s7, s75, 1'); a('s_mov_b64 exec, 1')
    a(f'v_mov_b32 v9, {WS_EPOCH}'); a('v_mov_b32 v1, s7')
    a(f'global_store_dword v9, v1, {sp(P_WS)} sc1')
    a('s_mov_b64 exec, -1')
    a.label('L_nobump')

def build(stamps=False):
    a=Asm(); a.stamps=stamps
    if OPT.get('sel'): a.stamp_sel=set(OPT['sel'].split(','))
    prologue(a)
    a.stamp('rt0',True); a.stamp('t0')
    for i in range(4): a(f'v_mov_b32 v{16+i}, 0')
    for r in (9,14,170,8,11): a(f'v_mov_b32 v{r}, 0')
    a('v_and_b32 v20, 7, v2'); a('v_lshlrev_b32 v20, 4, v20'); a(f'v_add_u32 v20, {FL}, v20')
    a('ds_write_b128 v20, v[16:19]')
    tile_addr(a)
    a('s_waitcnt lgkmcnt(0)')
    a.stamp('karg')
    param_loads(a)
    a('s_barrier')
    a('s_cmp_eq_u32 s64, 0'); a('s_cbranch_scc1 L_Aissue')
    B_issue(a)
    a('s_branch L_Bcalc')
    a.label('L_Aissue'); a.hist=[]
    A_issue(a)
    a('s_branch L_kgen')
    a.label('L_Bcalc'); a.hist=[]
    B_calc(a)
    a.label('L_kgen')
    a.stamp('params')
    a.auto_lgkm=True; a.lgkm_sync()
    a('s_waitcnt lgkmcnt(0)')
    kgen(a, lambda i: ahook(a,i))
    a('s_cmp_eq_u32 s64, 0'); a('s_cbranch_scc0 L_Brest')
    dq=list(a.dsq)
    A_rest(a)
    a('s_branch L_done')
    a.label('L_Brest')
    a.hist=[]; a.auto_lgkm=True; a.dsq=dq
    B_rest(a)
    a.label('L_done')
    a.auto_lgkm=False
    a.stamp('end'); a.stamp('rt1',True); a.dump_stamps(WS_TS)
    a.label('L_end')
    a('s_endpgm')
    a.label('L_codeend')
    return a

def gen(stamps=False):
    HEAD = open('cdna_kernels/%s.s.ref' % NAME).read().split('; Override launch')[0]
    a=build(stamps)
    if stamps: HEAD += '; STAMPS ' + ','.join(k for k,v in sorted(a.stamp_names.items(), key=lambda kv: kv[1])) + '\n'
    label=NAME+'_kernel'
    out=HEAD+f'; @launch grid=(256,1,1) block=(512,1,1) lds={LDS_TOTAL}\n'
    out+='.amdgcn_target "amdgcn-amd-amdhsa--gfx950"\n.text\n'
    out+=f'.globl {label}\n.p2align 8\n.type {label},@function\n{label}:\n'+a.text()
    out+=('.section .rodata,"a"\n.p2align 6\n'
          f'.amdhsa_kernel {label}\n  .amdhsa_next_free_vgpr 256\n  .amdhsa_next_free_sgpr 100\n  .amdhsa_accum_offset 256\n'
          '  .amdhsa_group_segment_fixed_size 0\n  .amdhsa_kernarg_size 136\n  .amdhsa_user_sgpr_count 2\n'
          '  .amdhsa_user_sgpr_kernarg_segment_ptr 1\n  .amdhsa_system_sgpr_workgroup_id_x 1\n  .amdhsa_float_denorm_mode_32 3\n.end_amdhsa_kernel\n')
    return out
if __name__=='__main__':
    for x in sys.argv[2:]:
        if '=' in x: k,v=x.split('=',1); OPT[k]=v
        else: OPT[x]=True
    open(sys.argv[1],'w').write(gen('stamps' in sys.argv))
```
